```python
import torch

def _softmax(x, axis=-1):
    return torch.softmax(x, dim=axis)
def _gelu(x):
    return torch.nn.functional.gelu(x, approximate="tanh")
def _silu(x):
    return torch.nn.functional.silu(x)
def _sigmoid(x):
    return torch.sigmoid(x)
def _layernorm(x, axis=-1, eps=1e-5):
    m = x.mean(dim=axis, keepdim=True)
    v = x.var(dim=axis, keepdim=True, unbiased=False)
    return (x - m) / torch.sqrt(v + eps)
def _scatter_add(tgt, idx, src, axis=0):
    return tgt.clone().index_add_(axis, idx, src)
def _segment_sum(src, seg, n):
    out = torch.zeros((n,) + src.shape[1:], dtype=src.dtype)
    return out.index_add_(0, seg, src)
def _pad(x, pw):
    flat = tuple(v for pair in reversed(pw) for v in pair)
    return torch.nn.functional.pad(x, flat)

kernel_name = 'concat_heads__spectral_gfnet__compressed_kv_cla__prompt'

def setup_inputs():

    _w = (lambda a: (lambda t: t.to(torch.bfloat16) if t.is_floating_point() else t)(torch.as_tensor(a)))
    def _A_setup():
        B, S, D = 1, 2048, 448
        Df = D // 2 + 1
        return {
            "x": _w((lambda *s: torch.randn(*s, dtype=torch.bfloat16) * 0.05)(B, S, D)),
            "w_r": _w((lambda *s: torch.randn(*s, dtype=torch.bfloat16) * 0.05)(S, Df) * 0.02),
            "w_i": _w((lambda *s: torch.randn(*s, dtype=torch.bfloat16) * 0.05)(S, Df) * 0.02),
        }
    _A_in = _A_setup()

    def _B_setup():
        B, H, Sq, Sk, D, M = 1, 16, 2048, 2048, 256, 448
        Dc = 4 * D
        return {
            "x": _w((lambda *s: torch.randn(*s, dtype=torch.bfloat16) * 3.2)(B, Sq, M)),
            "c_kv": _w((lambda *s: torch.randn(*s, dtype=torch.bfloat16) * 0.05)(B, Sk, Dc)),
            "w_q": _w((lambda *s: torch.randn(*s, dtype=torch.bfloat16) * 3.2)(M, H, D) * (M ** -0.5)),
            "w_uk": _w((lambda *s: torch.randn(*s, dtype=torch.bfloat16) * 3.2)(Dc, H, D) * (Dc ** -0.5)),
            "w_uv": _w((lambda *s: torch.randn(*s, dtype=torch.bfloat16) * 0.05)(Dc, H, D) * (Dc ** -0.5)),
            "w_o": _w((lambda *s: torch.randn(*s, dtype=torch.bfloat16) * 0.05)(H, D, M) * ((H * D) ** -0.5)),
        }
    _B_in = _B_setup()

    return {
        "A_x": _A_in["x"],
        "A_w_r": _A_in["w_r"],
        "A_w_i": _A_in["w_i"],
        "B_x": _B_in["x"],
        "B_c_kv": _B_in["c_kv"],
        "B_w_q": _B_in["w_q"],
        "B_w_uk": _B_in["w_uk"],
        "B_w_uv": _B_in["w_uv"],
        "B_w_o": _B_in["w_o"],
    }

def reference(A_x, A_w_r, A_w_i, B_x, B_c_kv, B_w_q, B_w_uk, B_w_uv, B_w_o):
    def _A_ref(x, w_r, w_i):
        B, S, D = x.shape
        X = (lambda x, axes=(-2,-1): torch.fft.rfft2(x.float(), dim=axes))(x, axes=(-2, -1))
        W = w_r + 1j * w_i
        X = X * W
        y = (lambda x, s, axes=(-2,-1): torch.fft.irfft2(x, s=s, dim=axes).to(torch.bfloat16))(X, (S, D), axes=(-2, -1))
        return y

    def _B_ref(x, c_kv, w_q, w_uk, w_uv, w_o):
        B, Sq, M = x.shape[0], x.shape[1], x.shape[2]
        Sk = c_kv.shape[1]
        H, D = w_q.shape[1], w_q.shape[2]
        q = torch.einsum("bqm,mhd->bhqd", x, w_q)
        k = torch.einsum("bkc,chd->bhkd", c_kv, w_uk)
        v = torch.einsum("bkc,chd->bhkd", c_kv, w_uv)
        scores = torch.einsum("bhqd,bhkd->bhqk", q, k) * (D ** -0.5)
        off = Sk - Sq
        qi = torch.arange(Sq)[:, None]
        kj = torch.arange(Sk)[None, :]
        cmask = kj <= (qi + off)
        scores = torch.where(cmask[None, None], scores, -1e9)
        p = _softmax(scores, axis=-1)
        ctx = torch.einsum("bhqk,bhkd->bhqd", p, v)
        return torch.einsum("bhqd,hdm->bqm", ctx, w_o)

    a = _A_ref(A_x, A_w_r, A_w_i)
    b = _B_ref(B_x, B_c_kv, B_w_q, B_w_uk, B_w_uv, B_w_o)
    return torch.concatenate([a, b], axis=-1)
```

```python
class Asm:
    def __init__(self):
        self.L = []
        self.uid = 0
    def e(self, s):
        for ln in s.split("\n"):
            ln = ln.strip()
            if ln:
                self.L.append(ln if ln.endswith(":") or ln.startswith(".") else "  " + ln)
    def label(self, name):
        self.L.append(name + ":")
    def new(self, base):
        self.uid += 1
        return "%s_%d" % (base, self.uid)
    def text(self):
        return "\n".join(self.L) + "\n"

def v(i, n=1):
    return "v%d" % i if n == 1 else "v[%d:%d]" % (i, i + n - 1)
def a(i, n=1):
    return "a%d" % i if n == 1 else "a[%d:%d]" % (i, i + n - 1)
def s(i, n=1):
    return "s%d" % i if n == 1 else "s[%d:%d]" % (i, i + n - 1)

def interleave(A, mfmas, slots, pre=None):
    for g in slots:
        if not any(x.startswith("s_barrier") for x in slots[g]):
            w = [x for x in slots[g] if x.startswith("s_waitcnt")]
            slots[g] = [x for x in slots[g] if not x.startswith("s_waitcnt")] + w
    for f in slots.get(-1, []):
        A.e(f)
    for g, m in enumerate(mfmas):
        A.e(m)
        for f in slots.get(g, []):
            A.e(f)

def place(slots, items, gaps):
    assert len(gaps) >= len(items), (len(gaps), len(items))
    for it, g in zip(items, gaps):
        if isinstance(it, (list, tuple)):
            slots.setdefault(g, []).extend(it)
        else:
            slots.setdefault(g, []).append(it)

def kd(name, vgpr, accum, sgpr=102):
    return """.p2align 6
.amdhsa_kernel %s
  .amdhsa_next_free_vgpr %d
  .amdhsa_next_free_sgpr %d
  .amdhsa_accum_offset %d
  .amdhsa_group_segment_fixed_size 0
  .amdhsa_kernarg_size 96
  .amdhsa_user_sgpr_count 2
  .amdhsa_user_sgpr_kernarg_segment_ptr 1
  .amdhsa_system_sgpr_workgroup_id_x 1
  .amdhsa_float_denorm_mode_32 3
.end_amdhsa_kernel
""" % (name, vgpr, sgpr, accum)

def srd(A, d, base, nbytes):
    A.e("s_mov_b32 s%d, s%d" % (d, base))
    A.e("s_and_b32 s%d, s%d, 0xffff" % (d + 1, base + 1))
    A.e("s_mov_b32 s%d, 0x%x" % (d + 2, nbytes))
    A.e("s_mov_b32 s%d, 0x20000" % (d + 3))

def srd_off(A, d, base, off, nbytes):
    A.e("s_add_u32 s%d, s%d, 0x%x" % (d, base, off))
    A.e("s_addc_u32 s%d, s%d, 0" % (d + 1, base + 1))
    A.e("s_and_b32 s%d, s%d, 0xffff" % (d + 1, d + 1))
    A.e("s_mov_b32 s%d, 0x%x" % (d + 2, nbytes))
    A.e("s_mov_b32 s%d, 0x20000" % (d + 3))

def code_touch(A, start_label, end_label, sd, vtmp, vdst, nthreads):
    here = A.new("L_pc")
    A.e("s_getpc_b64 s[%d:%d]" % (sd, sd + 1))
    A.label(here)
    A.e("s_and_b32 s%d, s%d, 0xffff" % (sd + 1, sd + 1))
    A.e("s_mov_b32 s%d, %s-%s" % (sd + 2, end_label, here))
    A.e("s_mov_b32 s%d, 0x20000" % (sd + 3))
    A.e("v_lshlrev_b32 v%d, 7, v0" % vtmp)
    A.e("buffer_load_dword v%d, v%d, s[%d:%d], 0 offen" % (vdst, vtmp, sd, sd + 3))

WS_K = 0x0000000
WS_V = 0x1000000
WS_Q = 0x2000000
WS_PO = 0x3000000
WS_OP = 0x5000000
WS_FL = 0x6000000
WS_X1 = 0x6100000
WS_WT = 0x6400000
WS_ZT = 0x6700000
WS_STAMP = 0x7000000


class VmTrack:
    def __init__(self):
        self.ops = []
    def add(self, tag, n=1):
        self.ops += [tag] * n
    def scan(self, lines, tagger):
        for ln in lines:
            if ln.startswith("buffer_") or ln.startswith("global_"):
                self.ops.append(tagger(ln))
    def wait_for(self, pred):
        last = max([i for i, t in enumerate(self.ops) if pred(t)], default=-1)
        return min(63, len(self.ops) - 1 - last)
```

```python
from asmlib import *
import struct
def f32bits(x):
    return struct.unpack('<I', struct.pack('<f', x))[0]

XR = 0
WR = 98304
QSCALE = 0x3db8aa3b

V_VOX = 4
V_VOW = 8
V_XB = 12
V_XR = 14
V_WB = 16
V_ST = 20
V_VA = 21
V_T = 24
FR = 32
QFR = 32
QACC = 128

def stamp(A, cfg, idx):
    if cfg.get("stamps"):
        A.e("s_memtime s[%d:%d]" % (60 + 2 * idx, 61 + 2 * idx))

def x_voffsets(A, stride, rows_per_wave_shift):
    A.e("v_and_b32 v1, 63, v0")
    A.e("v_lshrrev_b32 v2, 3, v1")
    A.e("s_lshl_b32 s3, s24, %d" % rows_per_wave_shift)
    A.e("v_add_u32 v2, s3, v2")
    A.e("v_mul_u32_u24 v2, %d, v2" % stride)
    A.e("v_lshrrev_b32 v3, 4, v1")
    A.e("v_and_b32 v1, 7, v1")
    A.e("v_xor_b32 v1, v1, v3")
    A.e("v_lshlrev_b32 v1, 4, v1")
    for i in range(4):
        if i & 1:
            A.e("v_xor_b32 v3, 64, v1")
            A.e("v_add_u32 v%d, v2, v3" % (V_VOX + i))
        else:
            A.e("v_add_u32 v%d, v2, v1" % (V_VOX + i))
        if i:
            A.e("v_add_u32 v%d, %d, v%d" % (V_VOX + i, i * (8 * stride - 1024), V_VOX + i))

def dma_w(p):
    L = ["s_add_u32 m0, s25, %d" % ((p % 4) * 16384)]
    L.append("s_nop 0")
    for j in range(4):
        L.append("buffer_load_dwordx4 v%d, s[12:15], s27 offen offset:%d lds" % (V_VOW + j, j * 1024))
    L.append("s_add_u32 s27, s27, 0x40000")
    L.append("s_and_b32 s27, s27, 0x7fffff")
    return L

def dma_x(half):
    L = []
    if half == 0:
        L.append("s_add_u32 m0, s29, s33")
        L.append("s_nop 0")
        so = "s28"
    else:
        L.append("s_add_u32 m0, s29, s34")
        L.append("s_add_u32 s35, s28, s32")
        so = "s35"
    for j in range(4):
        L.append("buffer_load_dwordx4 v%d, s[8:11], %s offen offset:%d lds" % (V_VOX + j, so, j * 1024))
    if half == 1:
        L.append("s_add_u32 s26, s26, 128")
        L.append("s_and_b32 s26, s26, 0x7ff")
        L.append("s_add_u32 s28, s6, s26")
        L.append("s_add_u32 s29, s29, 0x8000")
        L.append("s_cmp_eq_u32 s29, 0x18000")
        L.append("s_cselect_b32 s29, 0, s29")
    return L

def x_rd_base(p):
    L = []
    if p % 2 == 0:
        L += ["s_add_u32 s30, s30, 0x8000", "s_cmp_eq_u32 s30, 0x18000", "s_cselect_b32 s30, 0, s30"]
    L.append("v_add_u32 v%d, s30, v%d" % (V_XR, V_XB + (p & 1)))
    return L

def kv_reads(p):
    b = FR + 64 * (p & 1)
    X = ["ds_read_b128 %s, v%d offset:%d" % (v(b + 4 * i, 4), V_XR, i * 2048) for i in range(8)]
    W = []
    for i in range(8):
        for e in range(2):
            W.append("ds_read_b64_tr_b16 %s, v%d offset:%d" % (v(b + 32 + 4 * i + 2 * e, 2), V_WB + (i & 3), (p % 4) * 16384 + (i >> 2) * 4096 + e * 512))
    return X, W

def q_reads(p):
    b = QFR + 48 * (p & 1)
    X = ["ds_read_b128 %s, v%d offset:%d" % (v(b + 4 * i, 4), V_XR, i * 2048) for i in range(8)]
    W = []
    for i in range(4):
        for e in range(2):
            W.append("ds_read_b64_tr_b16 %s, v%d offset:%d" % (v(b + 32 + 4 * i + 2 * e, 2), V_WB + i, (p % 4) * 16384 + e * 512))
    return X, W

def kv_period(A, p, isV, extra_pre=None):
    b = FR + 64 * (p & 1)
    mf = []
    for i in range(8):
        for j in range(8):
            t = (i * 8 + j) * 4
            if isV:
                ra, rb = b + 4 * i, b + 32 + 4 * j
            else:
                ra, rb = b + 32 + 4 * i, b + 4 * j
            mf.append("v_mfma_f32_16x16x32_bf16 %s, %s, %s, %s" % (a(t, 4), v(ra, 4), v(rb, 4), a(t, 4)))
    X, W = kv_reads(p + 1)
    slots = {}
    slots[-1] = ["s_waitcnt vmcnt(16) lgkmcnt(0)", "s_barrier"]
    place(slots, x_rd_base(p + 1), [0, 0, 1, 1])
    rd = []
    for i in range(8):
        rd += [W[2 * i], W[2 * i + 1], X[i]]
    place(slots, rd, list(range(2, 50, 2)))
    d = dma_w(p) + dma_x((p + 1) & 1 ^ 0 if False else (0 if p % 2 == 1 else 1))
    d = [x for x in d if x != "s_nop 0"]
    place(slots, d, list(range(3, 63, 3)))
    if extra_pre:
        A.e(extra_pre)
    interleave(A, mf, slots)

def kv_epilogue(A, isV):
    for a_ in range(4):
        for j in range(8):
            t0 = ((2 * a_) * 8 + j) * 4
            t1 = ((2 * a_ + 1) * 8 + j) * 4
            T = V_T
            for r in range(4):
                A.e("v_accvgpr_read_b32 v%d, a%d" % (T + r, t0 + r))
            for r in range(4):
                A.e("v_accvgpr_read_b32 v%d, a%d" % (T + 4 + r, t1 + r))
            D = 112 + 4 * (j & 3)
            for r in range(4):
                A.e("v_cvt_pk_bf16_f32 v%d, v%d, v%d" % (D + r, T + 2 * r, T + 2 * r + 1))
            if isV:
                off = a_ * 16384 + (j >> 1) * 2048 + (j & 1) * 256
            else:
                off = (j >> 1) * 16384 + a_ * 2048 + (j & 1) * 256
            A.e("s_add_u32 s3, s36, %d" % (off & ~0xfff))
            A.e("buffer_store_dwordx4 %s, v%d, s[16:19], s3 offen offset:%d" % (v(D, 4), V_ST, off & 0xfff))

def gen_k1(A, cfg):
    name = "k1_kernel"
    A.e(".p2align 8\n.type %s,@function" % name)
    A.label(name)
    A.e("s_cmp_ge_u32 s2, 256\ns_cbranch_scc1 K1_END")
    stamp(A, cfg, 0)
    if cfg.get("stamps"): A.e("s_memrealtime s[88:89]")
    A.e("s_load_dwordx16 s[36:51], s[0:1], 24\ns_load_dwordx2 s[52:53], s[0:1], 88")
    A.e("s_load_dwordx4 s[96:99], s[0:1], 0\ns_load_dwordx2 s[100:101], s[0:1], 16")
    code_touch(A, name, "K1_END", 20, 1, 23, 256)
    A.e("v_lshrrev_b32 v1, 6, v0\ns_nop 0\nv_readfirstlane_b32 s24, v1")
    A.e("s_and_b32 s54, s2, 7\ns_lshr_b32 s55, s2, 3")
    A.e("s_lshr_b32 s3, s55, 4\ns_lshl_b32 s54, s54, 1\ns_add_u32 s54, s54, s3")
    A.e("s_lshr_b32 s56, s55, 3\ns_and_b32 s56, s56, 1")
    A.e("s_and_b32 s57, s55, 7")
    A.e("s_lshl_b32 s25, s24, 12\ns_add_u32 s25, s25, %d" % WR)
    A.e("s_lshl_b32 s33, s24, 13\ns_add_u32 s34, s33, 4096")
    A.e("s_mov_b32 s32, %d" % (32 * 2048))
    A.e("s_lshl_b32 s6, s57, 19")
    A.e("s_lshl_b32 s27, s54, 9")
    if cfg.get("rot", 1):
        A.e("s_and_b32 s3, s2, 7\ns_lshl_b32 s26, s3, 8\ns_lshl_b32 s3, s3, 20\ns_add_u32 s27, s27, s3")
    else:
        A.e("s_mov_b32 s26, 0")
    A.e("s_add_u32 s28, s6, s26")
    A.e("s_mov_b32 s29, 0")
    x_voffsets(A, 2048, 6)
    A.e("v_and_b32 v1, 63, v0\nv_lshrrev_b32 v2, 3, v1\nv_lshlrev_b32 v2, 13, v2")
    A.e("s_lshl_b32 s3, s24, 7\nv_add_u32 v2, s3, v2")
    A.e("v_lshrrev_b32 v3, 3, v1\nv_and_b32 v3, 2, v3\nv_and_b32 v1, 7, v1\nv_xor_b32 v1, v1, v3\nv_lshlrev_b32 v1, 4, v1")
    for j in range(4):
        if j & 1:
            A.e("v_xor_b32 v3, 64, v1\nv_add_u32 v%d, v2, v3" % (V_VOW + j))
        else:
            A.e("v_add_u32 v%d, v2, v1" % (V_VOW + j))
        if j:
            A.e("v_add_u32 v%d, %d, v%d" % (V_VOW + j, j * (65536 - 1024), V_VOW + j))
    A.e("s_waitcnt lgkmcnt(0)")
    stamp(A, cfg, 1)
    srd(A, 8, 38, 2048 * 2048)
    A.e("s_cmp_eq_u32 s56, 0\ns_cselect_b32 s4, s42, s44\ns_cselect_b32 s5, s43, s45")
    srd(A, 12, 4, 1024 * 8192)
    srd(A, 16, 52, 0x3000000)
    srd_off(A, 20, 52, WS_FL, 0x8000)
    A.e("v_mov_b32 v1, 0\nv_lshlrev_b32 v2, 2, v0\ns_lshl_b32 s3, s2, 7\nv_cmp_gt_u32 vcc, 32, v0\ns_and_saveexec_b64 s[4:5], vcc\ns_cbranch_execz K1_nofl")
    A.e("buffer_store_dword v1, v2, s[20:23], s3 offen")
    A.label("K1_nofl")
    A.e("s_mov_b64 exec, s[4:5]")
    for ln in dma_x(0): A.e(ln)
    for p in range(-4, 0):
        for ln in dma_w(p): A.e(ln)
        for ln in dma_x(0 if p % 2 == 1 else 1): A.e(ln)
        if cfg.get("stamps") == 3:
            A.e("s_memtime s[%d:%d]" % (80 + 2 * (p + 4), 81 + 2 * (p + 4)))
    stamp(A, cfg, 2)
    A.e("v_and_b32 v1, 15, v0\nv_bfe_u32 v2, v0, 4, 2")
    A.e("v_lshrrev_b32 v3, 1, v1\nv_xor_b32 v3, v3, v2\nv_lshlrev_b32 v3, 4, v3")
    A.e("v_lshl_add_u32 v%d, v1, 7, v3" % V_XB)
    A.e("s_lshr_b32 s3, s24, 1\ns_lshl_b32 s58, s3, 14")
    A.e("v_add_u32 v%d, s58, v%d" % (V_XB, V_XB))
    A.e("v_xor_b32 v%d, 64, v%d" % (V_XB + 1, V_XB))
    A.e("v_bfe_u32 v3, v0, 2, 2")
    A.e("v_lshl_add_u32 v%d, v2, 3, v3" % V_T)
    A.e("v_lshlrev_b32 v%d, 7, v%d" % (V_T, V_T))
    A.e("v_and_b32 v%d, 3, v0\nv_lshl_add_u32 v%d, v%d, 3, v%d" % (V_T + 1, V_T, V_T + 1, V_T))
    A.e("v_lshrrev_b32 v3, 1, v3\nv_and_b32 v2, 1, v2\nv_lshl_add_u32 v3, v2, 1, v3")
    A.e("s_and_b32 s3, s24, 1\ns_lshl_b32 s59, s3, 13\ns_add_u32 s3, s59, %d" % WR)
    A.e("v_add_u32 v%d, s3, v%d" % (V_T, V_T))
    for u in range(4):
        A.e("v_xor_b32 v2, %d, v3\nv_lshl_add_u32 v%d, v2, 5, v%d" % (u, V_WB + u, V_T))
    A.e("v_bfe_u32 v2, v0, 4, 2\nv_lshlrev_b32 v2, 9, v2\nv_lshl_add_u32 v%d, v1, 4, v2" % V_ST)
    for i in range(256):
        A.e("v_accvgpr_write_b32 a%d, 0" % i)
    A.e("s_mov_b32 s30, 0\nv_mov_b32 v%d, v%d" % (V_XR, V_XB))
    stamp(A, cfg, 3)
    A.e("s_waitcnt vmcnt(24)\ns_barrier")
    X, W = kv_reads(0)
    for r in W + X: A.e(r)
    A.e("s_mov_b32 s31, 0")
    stamp(A, cfg, 4)
    A.e("s_cmp_eq_u32 s56, 0\ns_cbranch_scc0 K1_V")
    for isV in (0, 1):
        lab = "K1_V" if isV else "K1_K"
        A.e(".p2align 6") if isV else None
        A.label(lab)
        loop = lab + "_loop"
        A.label(loop)
        for p in range(4):
            pre = None
            kv_period(A, p, isV)
            if p == 2:
                sk = A.new("K1_skx")
                A.e("s_cmp_eq_u32 s31, 6\ns_cbranch_scc0 %s" % sk)
                srd(A, 8, 36, 2048 * 896)
                x_voffsets(A, 896, 5)
                A.e("s_and_b32 s3, s55, 15\ns_mul_i32 s28, s3, %d\ns_mov_b32 s6, s28\ns_mov_b32 s26, 0" % (128 * 896))
                A.e("s_lshl_b32 s33, s24, 12\ns_add_u32 s34, s33, 16384\ns_mov_b32 s32, 0x40000000")
                A.label(sk)
        sk = A.new("K1_skw")
        A.e("s_cmp_eq_u32 s31, 6\ns_cbranch_scc0 %s" % sk)
        srd(A, 12, 40, 448 * 8192)
        A.e("s_lshl_b32 s27, s54, 9")
        A.label(sk)
        if cfg.get("stamps") == 2:
            A.e("s_memtime s[86:87]\ns_waitcnt lgkmcnt(0)\ns_mov_b32 m0, s31\nv_writelane_b32 v15, s86, m0")
        A.e("s_add_u32 s31, s31, 1\ns_cmp_lt_u32 s31, 8\ns_cbranch_scc1 %s" % loop)
        stamp(A, cfg, 5)
        A.e("s_waitcnt lgkmcnt(0)")
        A.e("v_subrev_u32 v%d, s58, v%d\nv_xor_b32 v%d, 64, v%d" % (V_XB, V_XB, V_XB + 1, V_XB))
        A.e("s_lshl_b32 s3, s24, 12\ns_sub_u32 s3, s3, s59")
        for u in range(4):
            A.e("v_add_u32 v%d, s3, v%d" % (V_WB + u, V_WB + u))
        A.e("v_add_u32 v%d, s30, v%d" % (V_XR, V_XB))
        X, W = q_reads(32)
        for r in W + X: A.e(r)
        if not isV:
            A.e("s_mov_b32 s38, 2048\ns_mov_b32 s39, 16384\ns_mov_b32 s37, 0\ns_branch K1_Q")
        else:
            A.e("s_mov_b32 s38, 16384\ns_mov_b32 s39, 2048\ns_mov_b32 s37, 0x%x" % WS_V)
    A.label("K1_Q")
    A.e("s_lshl_b32 s3, s54, 20\ns_add_u32 s37, s37, s3\ns_lshl_b32 s3, s57, 17\ns_add_u32 s37, s37, s3")
    A.e("s_lshr_b32 s3, s24, 1\ns_lshl_b32 s3, s3, 16\ns_add_u32 s37, s37, s3\ns_add_u32 s37, s37, s59\ns_mov_b32 s36, s37")
    A.e("s_and_b32 s41, s2, 7\ns_lshr_b32 s40, s2, 3\ns_mul_i32 s42, s40, %d" % (64 * 896))
    A.e("v_and_b32 v1, 63, v0\nv_lshrrev_b32 v2, 3, v1\nv_lshlrev_b32 v2, 2, v2\nv_add_u32 v2, s24, v2\nv_mul_u32_u24 v2, 896, v2")
    A.e("v_lshrrev_b32 v3, 4, v1\nv_and_b32 v1, 7, v1\nv_xor_b32 v1, v1, v3\nv_lshlrev_b32 v1, 4, v1")
    A.e("v_add_u32 v%d, v2, v1\nv_xor_b32 v1, 64, v1\nv_add_u32 v%d, v2, v1\nv_add_u32 v%d, %d, v%d" % (V_VA, V_VA + 1, V_VA + 1, 32 * 896 - 1024, V_VA + 1))
    A.e("s_lshl_b32 s43, s24, 11")
    srd(A, 20, 96, 2048 * 896)
    stamp(A, cfg, 6)
    vt = VmTrack()
    for q in (29, 30, 31): vt.add(("d", q), 8)
    pieces = []
    for a_ in range(4):
        for j in range(8):
            t0 = ((2 * a_) * 8 + j) * 4
            t1 = ((2 * a_ + 1) * 8 + j) * 4
            T = V_T
            L = []
            for r in range(4): L.append("v_accvgpr_read_b32 v%d, a%d" % (T + r, t0 + r))
            L.append("v_cvt_pk_bf16_f32 v%d, v%d, v%d" % (T, T, T + 1))
            L.append("v_cvt_pk_bf16_f32 v%d, v%d, v%d" % (T + 1, T + 2, T + 3))
            for r in range(4): L.append("v_accvgpr_read_b32 v%d, a%d" % (T + 4 + r, t1 + r))
            L.append("v_cvt_pk_bf16_f32 v%d, v%d, v%d" % (T + 2, T + 4, T + 5))
            L.append("v_cvt_pk_bf16_f32 v%d, v%d, v%d" % (T + 3, T + 6, T + 7))
            L.append("buffer_store_dwordx4 %s, v%d, s[16:19], s36 offen offset:%d %s" % (v(T, 4), V_ST, (j & 1) * 256, cfg.get("kv_flags", "")))
            if j == 7:
                L.append(["s_add_u32 s37, s37, s38", "s_mov_b32 s36, s37"])
            elif j & 1:
                L.append(["s_add_u32 s36, s36, s39", "s_nop 0"])
            else:
                L.append("s_nop 1")
            pieces.append(L)
    stream = [x for p_ in pieces for x in p_]
    NP = cfg.get("epi_periods", 13)
    XA_LDS = [16384, 24576, 49152, 57344, 81920, 90112, 65536]
    for p in range(32, 46):
        b = QFR + 48 * (p & 1)
        mf = []
        for i in range(4):
            for j in range(8):
                t = QACC + (i * 8 + j) * 4
                c = "0" if p == 32 else v(t, 4)
                mf.append("v_mfma_f32_16x16x32_bf16 %s, %s, %s, %s" % (v(t, 4), v(b + 32 + 4 * i, 4), v(b + 4 * j, 4), c))
        slots = {}
        if p < 45:
            n = vt.wait_for(lambda t: t[0] == "d" and t[1] <= p - 3)
            slots[-1] = ["s_waitcnt vmcnt(%d) lgkmcnt(0)" % n, "s_barrier"]
            place(slots, x_rd_base(p + 1), [0, 0, 1, 1])
            X, W = q_reads(p + 1)
            rd = []
            for i in range(4):
                rd += [W[2 * i], X[2 * i], W[2 * i + 1], X[2 * i + 1]]
            place(slots, rd, list(range(2, 26, 3)) + list(range(3, 27, 3)))
            d = []
            adv = ["s_add_u32 s28, s28, 128", "s_add_u32 s29, s29, 0x8000", ["s_cmp_eq_u32 s29, 0x18000", "s_cselect_b32 s29, 0, s29"]]
            if p == 32:
                d += adv
            if p + 4 <= 45:
                d += dma_w(p)[:-1]
            if p % 2 == 1 and (p + 1) // 2 + 2 <= 22:
                d += dma_x(0) + adv
            xa = {34: 0, 36: 1, 38: 2, 40: 3, 41: 4, 42: 5, 43: 6}.get(p)
            if xa is not None:
                d += ["s_add_u32 m0, s43, %d" % XA_LDS[xa], "s_nop 0"]
                d += ["buffer_load_dwordx4 v%d, s[20:23], s42 offen offset:%d lds" % (V_VA + i, i * 1024) for i in range(2)]
                d += ["s_add_u32 s42, s42, 128"]
            d = [x for x in d if x != "s_nop 0"]
            place(slots, d, list(range(1, 31, 2)))
        else:
            slots[-1] = ["s_waitcnt lgkmcnt(0)"]
        k = p - 32
        if k < NP:
            lo, hi = (len(stream) * k) // NP, (len(stream) * (k + 1)) // NP
            it = stream[lo:hi]
            place(slots, it, [(i * 32) // len(it) for i in range(len(it))])
        for g in range(-1, 32):
            vt.scan(slots.get(g, []), lambda ln: ("s", p) if "store" in ln else (("a", p) if "s[20:23]" in ln else ("d", p)))
        interleave(A, mf, slots)
    stamp(A, cfg, 7)
    srd(A, 8, 98, 2048 * 450)
    srd(A, 12, 100, 2048 * 450)
    A.e("v_and_b32 v1, 31, v0\nv_bfe_u32 v2, v0, 5, 1\ns_lshl_b32 s3, s41, 5\nv_add_u32 v1, s3, v1")
    A.e("s_lshl_b32 s3, s40, 1\nv_add_u32 v2, s3, v2")
    A.e("v_lshlrev_b32 v22, 13, v1\nv_lshl_add_u32 v22, v2, 7, v22\ns_lshl_b32 s3, s24, 5\nv_add_u32 v22, s3, v22")
    A.e("s_lshl_b32 s3, s24, 7\nv_add_u32 v2, s3, v2\nv_mul_u32_u24 v2, 450, v2\nv_lshl_add_u32 v3, v1, 1, v2")
    A.e("v_mov_b32 v2, 0x7fff0000\nv_cmp_gt_u32 vcc, 225, v1\ns_nop 1\nv_cndmask_b32 v3, v2, v3, vcc")
    for j in range(8):
        k2 = 8 * (j >> 1) + (j & 1)
        A.e("s_mov_b32 s3, %d" % (k2 * 64 * 450))
        A.e("buffer_load_ushort v%d, v3, s[8:11], s3 offen\nbuffer_load_ushort v%d, v3, s[12:15], s3 offen" % (96 + j, 104 + j))
        vt.add(("w", 0), 2)
    A.e("s_lshl_b32 s36, s54, 20\ns_and_b32 s3, s55, 15\ns_lshl_b32 s3, s3, 16\ns_add_u32 s36, s36, s3")
    A.e("s_lshl_b32 s3, s24, 12\ns_add_u32 s36, s36, s3\ns_add_u32 s36, s36, 0x%x" % WS_Q)
    A.e("s_mov_b32 s4, 0x%x\ns_mov_b32 s5, s4" % QSCALE)
    for a_ in range(2):
        for j in range(8):
            t0 = QACC + ((2 * a_) * 8 + j) * 4
            t1 = QACC + ((2 * a_ + 1) * 8 + j) * 4
            for t in (t0, t0 + 2, t1, t1 + 2):
                A.e("v_pk_mul_f32 %s, %s, s[4:5]" % (v(t, 2), v(t, 2)))
            D = 32 + 4 * (j & 3)
            A.e("v_cvt_pk_bf16_f32 v%d, v%d, v%d" % (D, t0, t0 + 1))
            A.e("v_cvt_pk_bf16_f32 v%d, v%d, v%d" % (D + 1, t0 + 2, t0 + 3))
            A.e("v_cvt_pk_bf16_f32 v%d, v%d, v%d" % (D + 2, t1, t1 + 1))
            A.e("v_cvt_pk_bf16_f32 v%d, v%d, v%d" % (D + 3, t1 + 2, t1 + 3))
            off = (j >> 1) * 16384 + a_ * 2048 + (j & 1) * 256
            A.e("s_add_u32 s3, s36, %d" % (off & ~0xfff))
            A.e("buffer_store_dwordx4 %s, v%d, s[16:19], s3 offen offset:%d %s" % (v(D, 4), V_ST, off & 0xfff, cfg.get("q_flags", "")))
            vt.add(("s", 99))
    A.e("v_and_b32 v1, 15, v0\nv_bfe_u32 v2, v0, 4, 2\nv_lshrrev_b32 v3, 1, v1")
    A.e("s_lshl_b32 s3, s41, 5\ns_lshl_b32 s4, s24, 3\ns_add_u32 s4, s4, s3\nv_add_u32 v3, s4, v3\nv_cvt_f32_u32 v3, v3")
    A.e("v_mul_f32 v48, 0x%x, v3" % f32bits(1.0 / 448))
    A.e("v_and_b32 v1, 1, v1\nv_cvt_f32_u32 v1, v1\nv_mul_f32 v1, 0x3e800000, v1\nv_lshlrev_b32 v3, 3, v2\nv_cvt_f32_u32 v3, v3")
    A.e("v_fma_f32 v49, v3, v48, v1")
    A.e("s_waitcnt vmcnt(%d)" % vt.wait_for(lambda t: t[0] in "aw"))
    for j in range(8):
        A.e("v_lshl_or_b32 v%d, v%d, 16, v%d" % (96 + j, 104 + j, 96 + j))
    srd_off(A, 8, 52, WS_WT, 225 * 8192)
    A.e("buffer_store_dwordx4 v[96:99], v22, s[8:11], 0 offen\nbuffer_store_dwordx4 v[100:103], v22, s[8:11], 0 offen offset:16")
    A.e("s_barrier")
    for p in range(14):
        base = XA_LDS[p >> 1]
        fb = 64 + 16 * (p & 1)
        if base >= 65536 and (p == 0 or XA_LDS[(p - 1) >> 1] < 65536):
            A.e("v_add_u32 v%d, 0x10000, v%d\nv_add_u32 v%d, 0x10000, v%d" % (V_XB, V_XB, V_XB + 1, V_XB + 1))
        for j in range(4):
            A.e("ds_read_b128 %s, v%d offset:%d" % (v(fb + 4 * j, 4), V_XB + (p & 1), (base & 0xffff) + j * 2048))
        for j in range(8):
            A.e("v_fmamk_f32 v%d, v48, 0x%x, v49" % (52 + j, f32bits(float(32 * p + j))))
        for j in range(8):
            A.e("v_cos_f32 v%d, v%d" % (52 + j, 52 + j))
        g0 = 60 if p & 1 else 112
        for j in range(4):
            A.e("v_cvt_pk_bf16_f32 v%d, v%d, v%d" % (g0 + j, 52 + 2 * j, 53 + 2 * j))
        A.e("s_waitcnt lgkmcnt(0)\ns_nop 0")
        for j in range(4):
            A.e("v_mfma_f32_16x16x32_bf16 %s, %s, %s, %s" % (v(128 + 4 * j, 4), v(g0, 4), v(fb + 4 * j, 4), "0" if p == 0 else v(128 + 4 * j, 4)))
    srd_off(A, 12, 52, WS_X1, 225 * 8192)
    A.e("v_and_b32 v1, 15, v0\nv_lshlrev_b32 v1, 4, v1\nv_lshl_add_u32 v1, v2, 14, v1")
    A.e("s_lshl_b32 s4, s4, 13\ns_lshl_b32 s3, s40, 8\ns_add_u32 s4, s4, s3\ns_add_u32 s5, s4, 8192\ns_nop 3")
    for u in range(2):
        for j in range(4):
            A.e("v_cvt_pk_bf16_f32 v%d, v%d, v%d" % (32 + 4 * u + j, 128 + 4 * j + 2 * u, 129 + 4 * j + 2 * u))
        A.e("buffer_store_dwordx4 %s, v1, s[12:15], s%d offen" % (v(32 + 4 * u, 4), 4 + u))
    stamp(A, cfg, 8)
    if cfg.get("stamps"):
        A.e("s_waitcnt vmcnt(0)")
        stamp(A, cfg, 9)
        if cfg.get("stamps") == 3:
            A.e("s_mov_b32 s60, s62\ns_mov_b32 s62, s80\ns_mov_b32 s70, s68\ns_mov_b32 s72, s70\ns_mov_b32 s64, s82\ns_mov_b32 s66, s84\ns_mov_b32 s68, s86")
        if cfg.get("stamps") == 2:
            A.e("s_mov_b32 s60, s68")
            for i in range(8):
                A.e("v_readlane_b32 s%d, v15, %d" % (62 + 2 * i, i))
            A.e("s_nop 4")
        write_stamps(A, 0, 10, 52)
    A.label("K1_END")
    A.e("s_endpgm")
    return kd(name, 512, 256)

def write_stamps(A, kidx, n, wsp):
    A.e("s_memrealtime s[90:91]\ns_waitcnt lgkmcnt(0)")
    srd_off(A, 92, wsp, WS_STAMP + kidx * 0x40000, 0x40000)
    A.e("s_lshl_b32 s3, s2, 3\ns_add_u32 s3, s3, s24\ns_lshl_b32 s3, s3, 6")
    A.e("v_mov_b32 v1, 0\ns_mov_b64 exec, 1")
    for i in range(n):
        A.e("v_mov_b32 v2, s%d\nbuffer_store_dword v2, v1, s[92:95], s3 offen offset:%d" % (60 + 2 * i, 4 * i))
    A.e("v_mov_b32 v2, s90\nbuffer_store_dword v2, v1, s[92:95], s3 offen offset:60")
    A.e("v_mov_b32 v2, s88\nbuffer_store_dword v2, v1, s[92:95], s3 offen offset:56")
```

```python
from asmlib import *
from k1 import write_stamps, f32bits

V_VO = 4
V_RD = 8
V_L16 = 9
V_WB = 10
V_WR = 12
V_L = 14
V_MX = 15
V_M = 16
V_QM = 17
V_T = 18
V_E = 32
V_P = 48
V_NM = 64
V_S = 80
V_O = 128
A_Q = 0
A_F = 128
S_W = 24; S_N = 25; S_NW = 26; S_DIAG = 27; S_F = 28; S_N1 = 29; S_NSW = 30; S_K = 31; S_VV = 32; S_DK = 33; S_DV = 34
S_WS = 35; S_RS = 36; S_HB = 37; S_REM = 38; S_SEG = 39; S_W4 = 40; S_PO = 41; S_OP = 42; S_FLG = 43; S_Q2 = 44; S_N2 = 45; S_I = 46; S_HEAD = 47
S_WLIM = 56
NEG_INF = 0xff800000
THR = 0x41000000

def stamp(A, cfg, idx):
    if cfg.get("stamps"):
        A.e("s_memtime s[%d:%d]" % (60 + 2 * idx, 61 + 2 * idx))

def fill_items():
    L = ["s_mov_b32 m0, s%d" % S_WS]
    L.append("s_add_u32 s%d, s%d, 1" % (S_F, S_F))
    for j in range(4):
        L.append("buffer_load_dwordx4 v%d, s[8:11], s%d offen offset:%d lds" % (V_VO + j, S_K, j * 1024))
    L.append("s_add_u32 m0, s%d, 0x4000" % S_WS)
    L.append("s_add_u32 s%d, s%d, 0x8000" % (S_WS, S_WS))
    for j in range(4):
        L.append("buffer_load_dwordx4 v%d, s[8:11], s%d offen offset:%d lds" % (V_VO + j, S_VV, j * 1024))
    L.append(["s_cmp_eq_u32 s%d, s%d" % (S_WS, S_WLIM), "s_cselect_b32 s%d, s%d, s%d" % (S_WS, S_W4, S_WS)])
    L.append(["s_add_u32 s%d, s%d, s%d" % (S_VV, S_K, S_DV), "s_add_u32 s%d, s%d, s%d" % (S_K, S_K, S_DK)])
    L.append(["s_cmp_eq_u32 s%d, s%d" % (S_F, S_N1), "s_cselect_b32 s%d, s%d, s%d" % (S_K, S_HB, S_K)])
    return L

def flat(L):
    o = []
    for x in L:
        if isinstance(x, (list, tuple)): o.extend(x)
        else: o.append(x)
    return o

def switch_check(A):
    back = A.new("K2_swb")
    A.e("s_cmp_eq_u32 s%d, s%d" % (S_F, S_NSW))
    A.e("s_cbranch_scc0 %s" % back)
    A.e("s_getpc_b64 s[58:59]\ns_add_u32 s58, s58, 12\ns_addc_u32 s59, s59, 0\ns_branch K2_switch")
    A.label(back)

def rd_advance():
    return [["s_add_u32 s%d, s%d, 0x8000" % (S_RS, S_RS), "s_cmp_eq_u32 s%d, 0x28000" % S_RS],
            ["s_cselect_b32 s%d, 0, s%d" % (S_RS, S_RS), "v_add_u32 v%d, s%d, v%d" % (V_RD, S_RS, V_L16)]]

def frag(m):
    return a(A_F + 4 * (m % 16), 4)
def rd(m):
    return "ds_read_b128 %s, v%d offset:%d" % (frag(m), V_RD, (m % 32) * 1024)

def qk_mfma(s_):
    c = v(V_NM, 16) if s_ == 0 else v(V_S, 16)
    return "v_mfma_f32_32x32x16_bf16 %s, %s, %s, %s" % (v(V_S, 16), frag(s_), a(A_Q + 4 * s_, 4), c)
def pv_mfma(m):
    dt, ks = m >> 1, m & 1
    return "v_mfma_f32_32x32x16_bf16 %s, %s, %s, %s" % (v(V_O + 16 * dt, 16), frag(16 + m), v(V_P + 4 * ks, 4), v(V_O + 16 * dt, 16))

PK = [0, 2, 8, 10, 4, 6, 12, 14]
def finish_items():
    adds = ["v_add_f32 v%d, v%d, v%d" % (V_L, V_L, V_E + r) for r in range(16)]
    cv = ["v_cvt_pk_bf16_f32 v%d, v%d, v%d" % (V_P + i, V_E + PK[i], V_E + PK[i] + 1) for i in range(8)]
    return adds, cv
def max_items():
    L = ["v_max3_f32 v%d, v%d, v%d, v%d" % (V_MX, V_S, V_S + 1, V_S + 2)]
    for r in range(3, 15, 2):
        L.append("v_max3_f32 v%d, v%d, v%d, v%d" % (V_MX, V_MX, V_S + r, V_S + r + 1))
    L.append("v_max_f32 v%d, v%d, v%d" % (V_MX, V_MX, V_S + 15))
    return L

def cross_half(A, op, dst, src):
    A.e("v_mov_b32 v%d, v%d\nv_mov_b32 v%d, v%d\ns_nop 1" % (V_T, src, V_T + 1, src))
    A.e("v_permlane32_swap_b32 v%d, v%d\ns_nop 1" % (V_T, V_T + 1))
    A.e("%s v%d, v%d, v%d" % (op, dst, V_T, V_T + 1))

def apply_mask(A):
    A.e("v_mov_b32 v%d, 0x%x" % (V_T, NEG_INF))
    for r in range(16):
        kv = (r & 3) + 8 * (r >> 2)
        A.e("v_cmp_le_i32 vcc, %d, v%d\ns_nop 1\nv_cndmask_b32 v%d, v%d, v%d, vcc" % (kv, V_QM, V_NM + r, V_T, V_NM + r))

A2_IN = 0x20000
A2_EX = 0x22000
R_W = 32
R_C64 = 40; R_S64 = 48
R_C32 = 56; R_S32 = 64; R_N32 = 72
R_TC = 80; R_TS = 88
R_A = 96
R_D1 = 128; R_D2 = 144
R_YR = 160; R_YI = 168
R_BR = 176; R_BI = 180
R_ZR = 184; R_ZI = 192
R_TMP = 200

def a2_loads(A):
    A.e("s_cmp_lt_u32 s2, 225\ns_cbranch_scc0 K2_a2_noload")
    srd_off(A, 4, 52, WS_X1, 225 * 8192)
    A.e("v_lshrrev_b32 v2, 3, v%d\nv_and_b32 v2, 32, v2\nv_xor_b32 v2, v2, v%d" % (V_L16, V_L16))
    A.e("v_xor_b32 v3, 64, v2")
    A.e("s_lshl_b32 s3, s%d, 11\ns_add_u32 m0, s3, %d\ns_lshl_b32 s55, s2, 13\ns_add_u32 s3, s3, s55" % (S_W, A2_IN))
    A.e("buffer_load_dwordx4 v2, s[4:7], s3 offen lds\nbuffer_load_dwordx4 v3, s[4:7], s3 offen offset:1024 lds")
    srd_off(A, 4, 52, WS_WT, 225 * 8192)
    A.e("v_and_b32 v2, 15, v1\nv_lshrrev_b32 v3, 4, v1\nv_lshlrev_b32 v3, 5, v3\nv_lshl_add_u32 v2, v2, 7, v3")
    A.e("buffer_load_dwordx4 %s, v2, s[4:7], s3 offen\nbuffer_load_dwordx4 %s, v2, s[4:7], s3 offen offset:16" % (v(R_W, 4), v(R_W + 4, 4)))
    A.label("K2_a2_noload")

def trig_frag(A, dc, ds, step, base, consts):
    T = R_TMP
    for j in range(8):
        A.e("v_fmamk_f32 v%d, v%d, 0x%x, v%d" % (T + j, step, f32bits(float(consts[j])), base))
    for j in range(8):
        A.e("v_cos_f32 v%d, v%d\nv_sin_f32 v%d, v%d" % (T + 8 + j, T + j, T + j, T + j))
    for j in range(4):
        A.e("v_cvt_pk_bf16_f32 v%d, v%d, v%d" % (dc + j, T + 8 + 2 * j, T + 9 + 2 * j))
    for j in range(4):
        A.e("v_cvt_pk_bf16_f32 v%d, v%d, v%d" % (ds + j, T + 2 * j, T + 1 + 2 * j))

def a2_big(A, rb, off):
    for t in range(4):
        for p in range(2):
            for e in range(2):
                A.e("ds_read_b64_tr_b16 %s, v%d offset:%d" % (v(R_A + 4 * (2 * t + p) + 2 * e, 2), rb + t, off + p * 4096 + e * 512))
    for t in range(4):
        A.e("s_waitcnt lgkmcnt(%d)" % (12 - 4 * t))
        for p in range(2):
            for (d, f) in ((R_D1, R_C64), (R_D2, R_S64)):
                A.e("v_mfma_f32_16x16x32_bf16 %s, %s, %s, %s" % (v(d + 4 * t, 4), v(R_A + 4 * (2 * t + p), 4), v(f + 4 * p, 4), "0" if p == 0 else v(d + 4 * t, 4)))
    A.e("s_nop 7")

def a2_small(A, sr, si):
    A.e("s_nop 1")
    for T in range(2):
        A.e("v_mfma_f32_16x16x32_bf16 %s, %s, %s, 0" % (v(R_ZR + 4 * T, 4), v(R_C32 + 4 * T, 4), v(R_BR, 4)))
        A.e("v_mfma_f32_16x16x32_bf16 %s, %s, %s, 0" % (v(R_ZI + 4 * T, 4), v(R_C32 + 4 * T, 4), v(R_BI, 4)))
    for T in range(2):
        A.e("v_mfma_f32_16x16x32_bf16 %s, %s, %s, %s" % (v(R_ZR + 4 * T, 4), v(sr + 4 * T, 4), v(R_BI, 4), v(R_ZR + 4 * T, 4)))
        A.e("v_mfma_f32_16x16x32_bf16 %s, %s, %s, %s" % (v(R_ZI + 4 * T, 4), v(si + 4 * T, 4), v(R_BR, 4), v(R_ZI + 4 * T, 4)))
    A.e("s_nop 7")

def cmul(A, dr, di, xr, xi, c, s_, conj):
    A.e("v_mul_f32 v%d, v%d, v%d\nv_mul_f32 v%d, v%d, v%d" % (dr, xr, c, di, xi, c))
    A.e("v_fma_f32 v%d, %sv%d, v%d, v%d" % (dr, "" if conj else "-", xi, s_, dr))
    A.e("v_fma_f32 v%d, %sv%d, v%d, v%d" % (di, "-" if conj else "", xr, s_, di))

def pack_b(A, r, i):
    for j in range(4):
        A.e("v_cvt_pk_bf16_f32 v%d, v%d, v%d" % (R_BR + j, r + 2 * j, r + 2 * j + 1))
        A.e("v_cvt_pk_bf16_f32 v%d, v%d, v%d" % (R_BI + j, i + 2 * j, i + 2 * j + 1))

def a2_body(A, cfg):
    A.e("s_cmp_lt_u32 s2, 225\ns_cbranch_scc0 K2_a2_done")
    T = V_T
    A.e("v_and_b32 v2, 15, v1\nv_lshrrev_b32 v3, 4, v1")
    A.e("s_lshl_b32 s3, s%d, 4\nv_add_u32 v%d, s3, v2\nv_cvt_f32_u32 v%d, v%d" % (S_W, T + 6, T, T + 6))
    A.e("v_cvt_f32_u32 v%d, v3" % (T + 1))
    A.e("v_mul_f32 v%d, 0x%x, v%d" % (T + 2, f32bits(1 / 64), T))
    A.e("v_mul_f32 v%d, v%d, v%d\nv_mul_f32 v%d, 0x41000000, v%d" % (T + 3, T + 1, T + 2, T + 3, T + 3))
    for p in range(2):
        trig_frag(A, R_C64 + 4 * p, R_S64 + 4 * p, T + 2, T + 3, [32 * p + j for j in range(8)])
    nj = [8 * (j >> 1) + (j & 1) for j in range(8)]
    A.e("v_mul_f32 v%d, 0x%x, v%d" % (T + 2, f32bits(1 / 2048), T))
    A.e("v_mul_f32 v%d, v%d, v%d\nv_add_f32 v%d, v%d, v%d" % (T + 3, T + 1, T + 2, T + 3, T + 3, T + 3))
    for j in range(8):
        A.e("v_fmamk_f32 v%d, v%d, 0x%x, v%d" % (R_TS + j, T + 2, f32bits(float(nj[j])), T + 3))
    for j in range(8):
        A.e("v_cos_f32 v%d, v%d\nv_sin_f32 v%d, v%d" % (R_TC + j, R_TS + j, R_TS + j, R_TS + j))
    A.e("v_bfe_u32 v%d, v2, 1, 1\nv_lshlrev_b32 v%d, 3, v%d\nv_lshrrev_b32 v%d, 2, v2\nv_lshl_add_u32 v%d, v%d, 1, v%d" % (T + 4, T + 4, T + 4, T + 5, T + 4, T + 5, T + 4))
    A.e("v_and_b32 v%d, 1, v2\nv_add_u32 v%d, v%d, v%d\nv_cvt_f32_u32 v%d, v%d" % (T + 5, T + 4, T + 4, T + 5, T + 4, T + 4))
    for Tt in range(2):
        A.e("v_add_f32 v%d, 0x%x, v%d\nv_mul_f32 v%d, 0x%x, v%d" % (T + 2, f32bits(16.0 * Tt), T + 4, T + 2, f32bits(1 / 32), T + 2))
        A.e("v_mul_f32 v%d, v%d, v%d\nv_add_f32 v%d, v%d, v%d" % (T + 3, T + 1, T + 2, T + 3, T + 3, T + 3))
        trig_frag(A, R_C32 + 4 * Tt, R_S32 + 4 * Tt, T + 2, T + 3, nj)
    for j in range(8):
        A.e("v_xor_b32 v%d, 0x80008000, v%d" % (R_N32 + j, R_S32 + j))
    RB = R_TMP + 16; WBs = R_TMP + 20
    A.e("v_bfe_u32 v%d, v1, 2, 2\nv_lshl_add_u32 v%d, v3, 3, v%d\nv_lshlrev_b32 v%d, 7, v%d" % (T, T + 1, T, T + 1, T + 1))
    A.e("v_and_b32 v%d, 3, v1\nv_lshl_add_u32 v%d, v%d, 3, v%d\nv_add_u32 v%d, 0x%x, v%d" % (T + 2, T + 1, T + 2, T + 1, T + 1, A2_IN, T + 1))
    A.e("v_lshrrev_b32 v%d, 1, v%d\nv_and_b32 v%d, 1, v3\nv_lshl_add_u32 v%d, v%d, 1, v%d" % (T, T, T + 2, T, T + 2, T))
    for t in range(4):
        A.e("v_xor_b32 v%d, %d, v%d\nv_lshl_add_u32 v%d, v%d, 5, v%d" % (T + 2, t, T, RB + t, T + 2, T + 1))
    A.e("v_lshlrev_b32 v%d, 7, v%d\nv_lshl_add_u32 v%d, v3, 3, v%d\nv_add_u32 v%d, 0x%x, v%d" % (T + 1, T + 6, T + 1, T + 1, T + 1, A2_EX, T + 1))
    A.e("v_bfe_u32 v%d, v2, 1, 1\nv_bfe_u32 v%d, v2, 3, 1\nv_lshl_add_u32 v%d, v%d, 1, v%d" % (T, T + 2, T, T + 2, T))
    for t in range(4):
        A.e("v_xor_b32 v%d, %d, v%d\nv_lshl_add_u32 v%d, v%d, 5, v%d" % (T + 2, t, T, WBs + t, T + 2, T + 1))
    A.e("v_lshlrev_b32 v%d, 6, v%d\nv_lshl_add_u32 v%d, v3, 4, v%d" % (T + 7, T + 6, T + 7, T + 7))
    sc = 1.0 / (2048 * 448)
    A.e("s_mov_b32 s57, 0x%x\ns_cmp_eq_u32 s2, 0\ns_cselect_b32 s57, 0x%x, s57\ns_cmp_eq_u32 s2, 224\ns_cselect_b32 s57, 0x%x, s57" % (f32bits(2 * sc), f32bits(sc), f32bits(sc)))
    A.e("s_waitcnt vmcnt(40)\ns_barrier")
    a2_big(A, RB, 0)
    for j in range(8):
        q = 4 * (j >> 1) + 2 * (j & 1)
        A.e("v_add_f32 v%d, v%d, v%d\nv_sub_f32 v%d, v%d, v%d" % (R_D1 + q, R_D1 + q, R_D2 + q + 1, R_D1 + q + 1, R_D1 + q + 1, R_D2 + q))
        cmul(A, R_YR + j, R_YI + j, R_D1 + q, R_D1 + q + 1, R_TC + j, R_TS + j, True)
    pack_b(A, R_YR, R_YI)
    a2_small(A, R_S32, R_N32)
    for j in range(8):
        A.e("v_lshlrev_b32 v%d, 16, v%d\nv_and_b32 v%d, 0xffff0000, v%d" % (T, R_W + j, T + 1, R_W + j))
        A.e("v_mul_f32 v%d, s57, v%d\nv_mul_f32 v%d, s57, v%d" % (T, T, T + 1, T + 1))
        cmul(A, R_YR + j, R_YI + j, R_ZR + j, R_ZI + j, T, T + 1, False)
    pack_b(A, R_YR, R_YI)
    a2_small(A, R_N32, R_S32)
    for j in range(8):
        cmul(A, R_YR + j, R_YI + j, R_ZR + j, R_ZI + j, R_TC + j, R_TS + j, False)
        A.e("v_cvt_pk_bf16_f32 v%d, v%d, v%d" % (R_D1 + j, R_YR + j, R_YI + j))
    for t in range(4):
        A.e("ds_write_b64 v%d, %s" % (WBs + t, v(R_D1 + 2 * t, 2)))
    A.e("s_waitcnt lgkmcnt(0)\ns_barrier")
    a2_big(A, RB, A2_EX - A2_IN)
    for j in range(8):
        q = 4 * (j >> 1) + 2 * (j & 1)
        A.e("v_sub_f32 v%d, v%d, v%d\nv_add_f32 v%d, v%d, v%d" % (R_YR + j, R_D1 + q, R_D2 + q + 1, R_YI + j, R_D1 + q + 1, R_D2 + q))
    pack_b(A, R_YR, R_YI)
    srd_off(A, 4, 52, WS_ZT, 450 * 4096)
    A.e("s_add_u32 s3, s55, 4096")
    A.e("buffer_store_dwordx4 %s, v%d, s[4:7], s55 offen\nbuffer_store_dwordx4 %s, v%d, s[4:7], s3 offen" % (v(R_BR, 4), T + 7, v(R_BI, 4), T + 7))
    A.label("K2_a2_done")

def gen_k2(A, cfg):
    D = cfg.get("rdist", 8); WP = cfg.get("wper", 4)
    SPLIT = cfg.get("split", 34)
    name = "k2_kernel"
    A.e(".p2align 8\n.type %s,@function" % name)
    A.label(name)
    A.e("s_cmp_ge_u32 s2, 256\ns_cbranch_scc1 K2_END")
    stamp(A, cfg, 0)
    if cfg.get("stamps"): A.e("s_memrealtime s[88:89]")
    A.e("s_load_dwordx2 s[48:49], s[0:1], 64\ns_load_dwordx2 s[52:53], s[0:1], 88")
    code_touch(A, name, "K2_END", 20, 1, 30, 256)
    A.e("v_lshrrev_b32 v1, 6, v0\ns_nop 0\nv_readfirstlane_b32 s%d, v1" % S_W)
    A.e("s_and_b32 s3, s2, 7\ns_lshr_b32 s4, s2, 3\ns_lshr_b32 s5, s4, 4\ns_lshl_b32 s3, s3, 1\ns_add_u32 s%d, s3, s5" % S_HEAD)
    A.e("s_bfe_u32 s%d, s4, 0x30001" % S_I)
    A.e("s_and_b32 s%d, s4, 1" % S_SEG)
    A.e("s_lshl_b32 s%d, s%d, 20" % (S_HB, S_HEAD))
    A.e("s_lshl_b32 s%d, s%d, 12\ns_add_u32 s%d, s%d, 0x28000\ns_mov_b32 s%d, s%d" % (S_W4, S_W, S_WLIM, S_W4, S_WS, S_W4))
    A.e("s_sub_u32 s5, 15, s%d" % S_I)
    A.e("s_lshl_b32 s3, s%d, 3\ns_add_u32 s3, s3, s%d\ns_lshl_b32 s3, s3, 2\ns_add_u32 s3, s3, s%d" % (S_HEAD, S_I, S_W))
    A.e("s_mul_i32 s%d, s3, 0x4400\ns_lshl_b32 s%d, s3, 6" % (S_OP, S_FLG))
    A.e("s_lshl_b32 s6, s5, 2\ns_add_u32 s7, s6, 4")
    A.e("s_cmp_eq_u32 s%d, 1" % S_SEG)
    A.e("s_cselect_b32 s50, 0, %d\ns_cselect_b32 s51, %d, s7" % (SPLIT, SPLIT))
    A.e("s_lshl_b32 s3, s%d, 2\ns_add_u32 s3, s3, 4\ns_cmp_eq_u32 s%d, 1\ns_cselect_b32 s%d, 0, s3" % (S_I, S_SEG, S_N2))
    A.e("s_sub_u32 s%d, s51, s50\ns_mov_b32 s%d, s%d" % (S_N, S_N1, S_N))
    A.e("s_add_u32 s%d, s%d, s%d\ns_add_u32 s%d, s%d, 1" % (S_NSW, S_N1, S_N2, S_NSW, S_NSW))
    A.e("s_add_u32 s6, s6, s%d\ns_add_u32 s6, s6, 1" % S_W)
    A.e("s_cmp_le_u32 s6, s51\ns_cselect_b32 s%d, 1, 0" % S_DIAG)
    A.e("s_min_u32 s6, s6, s51\ns_max_u32 s6, s6, s50\ns_sub_u32 s%d, s6, s50" % S_NW)
    A.e("s_lshl_b32 s6, s5, 2\ns_add_u32 s6, s6, s%d\ns_lshl_b32 s7, s6, 14\ns_add_u32 s54, s7, s%d\ns_add_u32 s54, s54, 0x%x" % (S_W, S_HB, WS_Q))
    A.e("s_lshl_b32 s7, s%d, 2\ns_add_u32 s7, s7, s%d\ns_lshl_b32 s3, s7, 14\ns_add_u32 s%d, s3, s%d\ns_add_u32 s%d, s%d, 0x%x" % (S_I, S_W, S_Q2, S_HB, S_Q2, S_Q2, WS_Q))
    A.e("s_cmp_eq_u32 s%d, 1\ns_cselect_b32 s6, s6, s7\ns_lshl_b32 s3, s%d, 6\ns_add_u32 s6, s6, s3\ns_mul_i32 s%d, s6, 0x7000" % (S_SEG, S_HEAD, S_PO))
    A.e("s_lshl_b32 s%d, s50, 14\ns_add_u32 s%d, s%d, s%d" % (S_K, S_K, S_K, S_HB))
    A.e("s_mov_b32 s%d, 0x4000\ns_mov_b32 s%d, 0x%x\ns_mov_b32 s%d, 0\ns_mov_b32 s%d, 0\ns_mov_b32 s%d, 0x7ffff000" % (S_DK, S_DV, WS_V, S_F, S_RS, S_VV))
    A.e("v_and_b32 v1, 63, v0\nv_lshlrev_b32 v%d, 4, v1\nv_mov_b32 v%d, v%d" % (V_L16, V_RD, V_L16))
    A.e("v_add_u32 v%d, s%d, v%d" % (V_VO, S_W4, V_L16))
    for j in range(1, 4): A.e("v_mov_b32 v%d, v%d" % (V_VO + j, V_VO))
    A.e("s_waitcnt lgkmcnt(0)")
    if cfg.get("wsoff"):
        A.e("s_add_u32 s52, s52, 0x%x\ns_addc_u32 s53, s53, 0" % cfg["wsoff"])
    srd(A, 8, 52, 0x3000000)
    srd(A, 12, 52, 0x3000000)
    srd_off(A, 16, 52, WS_PO, 16 * 64 * 0x7000)
    def q_loads(so):
        for s_ in range(16):
            if s_ % 4 == 0 and s_:
                A.e("s_add_u32 s%d, s%d, 0x1000" % (so, so))
            A.e("buffer_load_dwordx4 %s, v%d, s[12:15], s%d offen offset:%d" % (a(A_Q + 4 * s_, 4), V_L16, so, (s_ % 4) * 1024))
    a2_loads(A)
    for ln in flat(fill_items()): A.e(ln)
    q_loads(54)
    for f in range(2):
        switch_check(A)
        for ln in flat(fill_items()): A.e(ln)
    A.e("v_and_b32 v2, 31, v1\nv_lshrrev_b32 v3, 5, v1\nv_lshlrev_b32 v3, 2, v3\nv_sub_u32 v%d, v2, v3" % V_QM)
    A.e("v_bfe_u32 v2, v1, 2, 2\nv_add_u32 v3, v3, v2\nv_lshlrev_b32 v3, 7, v3")
    A.e("v_lshrrev_b32 v2, 1, v2\nv_lshl_add_u32 v3, v2, 6, v3")
    A.e("v_bfe_u32 v2, v1, 4, 1\nv_lshl_add_u32 v3, v2, 5, v3\nv_and_b32 v2, 3, v1\nv_lshl_add_u32 v%d, v2, 3, v3" % V_WB)
    A.e("v_xor_b32 v%d, 64, v%d" % (V_WB + 1, V_WB))
    a2_body(A, cfg)
    stamp(A, cfg, 1)
    A.e("s_waitcnt vmcnt(16)\ns_barrier")
    stamp(A, cfg, 2)
    A.label("K2_seg")
    A.e("v_mov_b32 v%d, 0\nv_mov_b32 v%d, 0xf149f2ca" % (V_L, V_M))
    A.e("s_cmp_eq_u32 s%d, 0\ns_cbranch_scc1 K2_empty" % S_NW)
    for m in range(D): A.e(rd(m))
    for r in range(0, 16, 2): A.e("v_mov_b64 %s, 0" % v(V_NM + r, 2))
    A.e("s_cmp_eq_u32 s%d, 1\ns_cselect_b32 s3, s%d, 0\ns_cmp_eq_u32 s3, 0\ns_cbranch_scc1 K2_t0_nomask" % (S_NW, S_DIAG))
    apply_mask(A)
    A.label("K2_t0_nomask")
    switch_check(A)
    slots = {}
    for m in range(16):
        if m % WP == 0:
            out = min(D - WP, 16 - m - WP)
            slots.setdefault(m - 1, []).append("s_waitcnt lgkmcnt(%d)" % max(out, 0))
        if m + D < 16:
            slots.setdefault(m, []).insert(0, rd(m + D))
    fi = fill_items()
    place(slots, fi, list(range(0, 15)))
    z = ["v_mov_b64 %s, 0" % v(V_O + 2 * i, 2) for i in range(64)]
    place(slots, z, [i // 4 for i in range(64)])
    interleave(A, [qk_mfma(s_) for s_ in range(16)], slots)
    A.e("s_cmp_eq_u32 s%d, 2\ns_cbranch_scc0 K2_t0_w" % S_SEG)
    A.e("s_waitcnt vmcnt(8)\nv_mov_b32 v2, 1\nv_mov_b32 v3, s%d\ns_mov_b64 exec, 1" % S_FLG)
    srd_off(A, 4, 52, WS_FL, 0x8000)
    A.e("buffer_store_dword v2, v3, s[4:7], 0 offen sc1\ns_mov_b64 exec, -1")
    A.label("K2_t0_w")
    A.e("s_waitcnt vmcnt(16)\ns_barrier")
    for ln in flat(rd_advance()): A.e(ln)
    for m in range(D): A.e(rd(m))
    for ln in max_items(): A.e(ln)
    cross_half(A, "v_max_f32", V_M, V_MX)
    for r in range(16):
        A.e("v_sub_f32 v%d, v%d, v%d" % (V_E + r, V_S + r, V_M))
    for r in range(16):
        A.e("v_exp_f32 v%d, v%d" % (V_E + r, V_E + r))
        A.e("v_sub_f32 v%d, 0, v%d" % (V_NM + r, V_M))
    A.e("s_sub_u32 s%d, s%d, 1\ns_cmp_eq_u32 s%d, 0\ns_cbranch_scc1 K2_tail" % (S_REM, S_NW, S_REM))
    A.label("K2_top")
    A.e("s_cmp_eq_u32 s%d, 1\ns_cselect_b32 s3, s%d, 0\ns_cmp_eq_u32 s3, 0\ns_cbranch_scc1 K2_loop_nomask" % (S_REM, S_DIAG))
    apply_mask(A)
    A.label("K2_loop_nomask")
    switch_check(A)
    slots = {}
    for m in range(32):
        if m % WP == 0:
            slots.setdefault(m - 1, []).append("s_waitcnt lgkmcnt(%d)" % (D - WP))
        if m + D == 32:
            slots.setdefault(m - 1, []).extend(["s_waitcnt vmcnt(16)", "s_barrier"])
        slots.setdefault(m, []).insert(0, rd(m + D))
    bg = 32 - D
    ra = rd_advance()
    slots.setdefault(bg - 3, []).extend(ra[0])
    slots.setdefault(bg - 2, []).append(ra[1][0])
    slots[bg - 1].append(ra[1][1])
    adds, cv = finish_items()
    place(slots, adds, list(range(0, 16)))
    place(slots, cv, list(range(0, 14, 2)) + [13])
    place(slots, fi, list(range(1, 16)))
    mx = max_items()
    place(slots, mx, [17, 17, 18, 18, 19, 19, 20, 20])
    ex = ["v_exp_f32 v%d, v%d" % (V_E + r, V_S + r) for r in range(16)]
    place(slots, ex, cfg.get("expgaps", [17, 18, 19, 20, 21, 21, 22, 24, 25, 26, 27, 28, 28, 29, 30, 30]))
    place(slots, ["v_cmp_lt_f32 vcc, 0x%x, v%d" % (THR, V_MX)], [25])
    place(slots, [["s_sub_u32 s%d, s%d, 1" % (S_REM, S_REM)]], [29])
    interleave(A, [qk_mfma(s_) for s_ in range(16)] + [pv_mfma(m) for m in range(16)], slots)
    A.e("s_cbranch_vccnz K2_rare")
    A.label("K2_rare_back")
    A.e("s_cmp_eq_u32 s%d, 0\ns_cbranch_scc0 K2_top" % S_REM)
    A.label("K2_tail")
    stamp(A, cfg, 3)
    A.e("s_waitcnt lgkmcnt(0)")
    for m in range(16, 16 + D): A.e(rd(m))
    A.e("s_cmp_eq_u32 s%d, 0\ns_cbranch_scc0 K2_tail_noq" % S_SEG)
    q_loads(S_Q2)
    A.label("K2_tail_noq")
    for ln in cv + adds: A.e(ln)
    slots = {}
    for m in range(16):
        if m % WP == 0:
            out = min(D - WP, 16 - m - WP)
            slots.setdefault(m - 1, []).append("s_waitcnt lgkmcnt(%d)" % max(out, 0))
        if m + D < 16:
            slots.setdefault(m, []).insert(0, rd(16 + m + D))
    interleave(A, [pv_mfma(m) for m in range(16)], slots)
    A.label("K2_idle0")
    A.e("s_sub_u32 s%d, s%d, s%d" % (S_REM, S_N, S_NW))
    A.label("K2_idle")
    A.e("s_cmp_eq_u32 s%d, 0\ns_cbranch_scc1 K2_segend" % S_REM)
    switch_check(A)
    for ln in flat(fill_items()): A.e(ln)
    A.e("s_waitcnt vmcnt(16)\ns_barrier")
    for ln in flat(rd_advance()): A.e(ln)
    A.e("s_sub_u32 s%d, s%d, 1\ns_branch K2_idle" % (S_REM, S_REM))
    A.label("K2_empty")
    for ln in z: A.e(ln)
    A.e("s_cmp_eq_u32 s%d, 0\ns_cbranch_scc0 K2_idle0" % S_SEG)
    q_loads(S_Q2)
    A.e("s_branch K2_idle0")
    A.label("K2_rare")
    cross_half(A, "v_max_f32", V_MX, V_MX)
    A.e("v_max_f32 v%d, 0, v%d" % (V_MX, V_MX))
    A.e("v_sub_f32 v%d, 0, v%d\nv_exp_f32 v%d, v%d" % (V_T + 2, V_MX, V_T + 2, V_T + 2))
    A.e("v_add_f32 v%d, v%d, v%d" % (V_M, V_M, V_MX))
    for r in range(16):
        A.e("v_sub_f32 v%d, v%d, v%d" % (V_E + r, V_S + r, V_MX))
    for r in range(16):
        A.e("v_exp_f32 v%d, v%d" % (V_E + r, V_E + r))
        A.e("v_sub_f32 v%d, v%d, v%d" % (V_NM + r, V_NM + r, V_MX))
    A.e("v_mul_f32 v%d, v%d, v%d" % (V_L, V_L, V_T + 2))
    for r in range(128):
        A.e("v_mul_f32 v%d, v%d, v%d" % (V_O + r, V_O + r, V_T + 2))
    A.e("s_branch K2_rare_back")
    A.label("K2_switch")
    srd(A, 8, 48, 16 * 256 * 896)
    A.e("v_and_b32 v1, 63, v0\nv_lshrrev_b32 v2, 3, v1\ns_lshl_b32 s3, s%d, 5\nv_add_u32 v2, s3, v2\nv_mul_u32_u24 v2, 896, v2" % S_W)
    A.e("v_bfe_u32 v3, v1, 4, 1\nv_lshlrev_b32 v3, 2, v3\nv_and_b32 v1, 7, v1\nv_xor_b32 v1, v1, v3\nv_lshl_add_u32 v%d, v1, 4, v2" % V_VO)
    for j in range(1, 4):
        A.e("v_add_u32 v%d, %d, v%d" % (V_VO + j, j * (8 * 896 - 1024), V_VO))
    A.e("s_mul_i32 s%d, s%d, %d\ns_add_u32 s%d, s%d, %d" % (S_K, S_HEAD, 256 * 896, S_VV, S_K, 128 * 896))
    A.e("s_mov_b32 s%d, 128\ns_mov_b32 s%d, %d" % (S_DK, S_DV, 128 * 896 + 128))
    A.e("s_setpc_b64 s[58:59]")
    A.label("K2_segend")
    stamp(A, cfg, 4)
    A.e("s_nop 7")
    cross_half(A, "v_add_f32", V_L, V_L)
    A.e("s_cmp_eq_u32 s%d, 0\ns_cbranch_scc0 K2_final" % S_SEG)
    srd_off(A, 4, 52, WS_OP, 512 * 0x4400)
    for s_ in range(16):
        Dd = V_E + 4 * (s_ & 3)
        for r in range(4):
            A.e("v_cvt_pk_bf16_f32 v%d, v%d, v%d" % (Dd + r, V_O + 8 * s_ + 2 * r, V_O + 8 * s_ + 2 * r + 1))
        if s_ % 4 == 0 and s_:
            A.e("s_add_u32 s%d, s%d, 0x1000" % (S_OP, S_OP))
        A.e("buffer_store_dwordx4 %s, v%d, s[4:7], s%d offen offset:%d sc1" % (v(Dd, 4), V_L16, S_OP, (s_ % 4) * 1024))
    A.e("v_mov_b32 v%d, v%d\nv_mov_b32 v%d, v%d\nv_lshrrev_b32 v1, 1, v%d\ns_add_u32 s%d, s%d, 0x1000" % (V_T, V_M, V_T + 1, V_L, V_L16, S_OP, S_OP))
    A.e("buffer_store_dwordx2 %s, v1, s[4:7], s%d offen sc1" % (v(V_T, 2), S_OP))
    A.e("s_mov_b32 s%d, 2\ns_mov_b32 s%d, s%d\ns_lshl_b32 s3, s%d, 2\ns_add_u32 s3, s3, s%d\ns_add_u32 s%d, s3, 1\ns_mov_b32 s%d, 1" % (S_SEG, S_N, S_N2, S_I, S_W, S_NW, S_DIAG))
    A.e("s_waitcnt vmcnt(17)")
    A.e("s_branch K2_seg")
    A.label("K2_final")
    switch_check(A)
    for ln in flat(fill_items()): A.e(ln)
    A.e("s_cmp_eq_u32 s%d, 1\ns_cbranch_scc1 K2_merge" % S_SEG)
    A.e("v_rcp_f32 v%d, v%d\ns_nop 0" % (V_T + 2, V_L))
    for s_ in range(16):
        for r in range(4):
            o = V_O + 8 * s_ + 2 * r
            A.e("v_pk_mul_f32 %s, %s, %s op_sel_hi:[1,0]" % (v(o, 2), v(o, 2), v(V_T + 2, 2)))
        for r in range(4):
            A.e("v_cvt_pk_bf16_f32 v%d, v%d, v%d" % (V_O + 4 * s_ + r, V_O + 8 * s_ + 2 * r, V_O + 8 * s_ + 2 * r + 1))
    A.e("s_waitcnt vmcnt(16)")
    A.e("s_branch K2_proj")
    A.label("K2_merge")
    srd_off(A, 4, 52, WS_FL, 0x8000)
    A.e("v_mov_b32 v3, s%d" % S_FLG)
    A.label("K2_poll")
    A.e("buffer_load_dword v2, v3, s[4:7], 0 offen sc1\ns_waitcnt vmcnt(0)\nv_readfirstlane_b32 s3, v2\ns_nop 3\ns_cmp_eq_u32 s3, 1\ns_cbranch_scc1 K2_got\ns_sleep 2\ns_branch K2_poll")
    A.label("K2_got")
    srd_off(A, 4, 52, WS_OP, 512 * 0x4400)
    A.e("s_add_u32 s3, s%d, 0x4000\nv_lshrrev_b32 v1, 1, v%d" % (S_OP, V_L16))
    A.e("buffer_load_dwordx2 %s, v1, s[4:7], s3 offen sc1" % v(V_T + 4, 2))
    for s_ in range(16):
        if s_ % 4 == 0 and s_:
            A.e("s_add_u32 s%d, s%d, 0x1000" % (S_OP, S_OP))
        A.e("buffer_load_dwordx4 %s, v%d, s[4:7], s%d offen offset:%d sc1" % (v(32 + 4 * s_, 4), V_L16, S_OP, (s_ % 4) * 1024))
    A.e("s_waitcnt vmcnt(16)")
    T = V_T
    A.e("v_max_f32 v%d, v%d, v%d" % (T, V_M, T + 4))
    A.e("v_sub_f32 v%d, v%d, v%d\nv_sub_f32 v%d, v%d, v%d" % (T + 2, V_M, T, T + 6, T + 4, T))
    A.e("v_exp_f32 v%d, v%d\nv_exp_f32 v%d, v%d\ns_nop 0" % (T + 2, T + 2, T + 6, T + 6))
    A.e("v_mul_f32 v%d, v%d, v%d\nv_fma_f32 v%d, v%d, v%d, v%d" % (T, T + 2, V_L, T, T + 6, T + 5, T))
    A.e("v_rcp_f32 v%d, v%d\ns_nop 0" % (T, T))
    A.e("v_mul_f32 v%d, v%d, v%d\nv_mul_f32 v%d, v%d, v%d" % (T + 2, T + 2, T, T + 6, T + 6, T))
    for s_ in range(16):
        A.e("s_waitcnt vmcnt(%d)" % (15 - s_))
        for r in range(4):
            o = V_O + 8 * s_ + 2 * r
            src = 32 + 4 * s_ + r
            A.e("v_lshlrev_b32 v%d, 16, v%d\nv_and_b32 v%d, 0xffff0000, v%d" % (T + 8, src, T + 9, src))
            A.e("v_pk_mul_f32 %s, %s, %s op_sel_hi:[1,0]" % (v(o, 2), v(o, 2), v(T + 2, 2)))
            A.e("v_pk_fma_f32 %s, %s, %s, %s op_sel_hi:[1,0,1]" % (v(o, 2), v(T + 8, 2), v(T + 6, 2), v(o, 2)))
        for r in range(4):
            A.e("v_cvt_pk_bf16_f32 v%d, v%d, v%d" % (V_O + 4 * s_ + r, V_O + 8 * s_ + 2 * r, V_O + 8 * s_ + 2 * r + 1))
    A.label("K2_proj")
    stamp(A, cfg, 5)
    A.e("s_barrier")
    def wo_base():
        return [["s_add_u32 s%d, s%d, 0x8000" % (S_RS, S_RS), "s_cmp_eq_u32 s%d, 0x28000" % S_RS],
                ["s_cselect_b32 s%d, 0, s%d" % (S_RS, S_RS)],
                ["v_add_u32 v%d, s%d, v%d" % (V_WR, S_RS, V_WB), "v_add_u32 v%d, s%d, v%d" % (V_WR + 1, S_RS, V_WB + 1)]]
    def wrd(m):
        s_, mt = (m % 32) >> 1, m & 1
        f = A_F + 4 * (m % 16)
        return ["ds_read_b64_tr_b16 %s, v%d offset:%d" % (a(f + 2 * e, 2), V_WR + mt, s_ * 2048 + e * 1024) for e in range(2)]
    DP = 6
    for ln in flat(wo_base()): A.e(ln)
    for m in range(DP):
        for ln in wrd(m): A.e(ln)
    def out_items(c):
        acc = 192 + 32 * (c & 1)
        L = []; ST = []
        for mt in range(2):
            for e in range(2):
                Dd = V_E + 4 * (2 * mt + e)
                for r in range(4):
                    L.append("v_cvt_pk_bf16_f32 v%d, v%d, v%d" % (Dd + r, acc + 16 * mt + 8 * e + 2 * r, acc + 16 * mt + 8 * e + 2 * r + 1))
                ST.append("buffer_store_dwordx4 %s, v%d, s[16:19], s%d offen offset:%d %s" % (v(Dd, 4), V_L16, S_PO, (2 * mt + e) * 1024, cfg.get("po_flags", "sc1")))
        ST.append("s_add_u32 s%d, s%d, 0x1000" % (S_PO, S_PO))
        return L + ST
    hist = [("f", 1, 8), ("f", 2, 8)]
    for c in range(7):
        acc = 192 + 32 * (c & 1)
        mf = []
        for m in range(32):
            s_, mt = m >> 1, m & 1
            cc = "0" if s_ == 0 else v(acc + 16 * mt, 16)
            mf.append("v_mfma_f32_32x32x16_bf16 %s, %s, %s, %s" % (v(acc + 16 * mt, 16), frag(m), v(V_O + 4 * s_, 4), cc))
        slots = {}
        last = c == 6
        if c < 4:
            place(slots, fill_items()[:-1], list(range(0, 14)))
            hist.append(("f", c + 3, 8))
        if c > 0:
            place(slots, out_items(c - 1), [2 + (k * 12) // 16 for k in range(16)] + [14, 16, 18, 20, 21])
            hist.append(("s", c - 1, 4))
        for m in range(32):
            if m % 2 == 0:
                rem = 2 * (DP - 2) if not last else max(0, min(2 * (DP - 2), 2 * (32 - m - 2)))
                slots.setdefault(m - 1, []).append("s_waitcnt lgkmcnt(%d)" % rem)
            if m + DP == 32 and not last:
                k = [i for i, h in enumerate(hist) if h[0] == "f" and h[1] == c + 1][0]
                n = sum(h[2] for h in hist[k + 1:])
                wb = wo_base()
                slots.setdefault(m - 3, []).extend(wb[0])
                slots.setdefault(m - 2, []).extend(wb[1])
                slots.setdefault(m - 1, []).extend(["s_waitcnt vmcnt(%d)" % n, "s_barrier"] + wb[2])
            if m + DP < 32 or not last:
                slots.setdefault(m, [])[0:0] = wrd(m + DP)
        interleave(A, mf, slots)
    A.e("s_nop 7\ns_nop 3")
    for ln in out_items(6): A.e(ln)
    stamp(A, cfg, 6)
    if cfg.get("stamps"):
        A.e("s_waitcnt vmcnt(0)")
        stamp(A, cfg, 7)
        write_stamps(A, 1, 8, 52)
    A.label("K2_END")
    A.e("s_endpgm")
    return kd(name, 512, 256)
```

```python
from asmlib import *
from k1 import write_stamps, f32bits
LAUNCH = "; @launch kernel=k3_kernel grid=(256,1,1) block=(448,1,1) lds=35840"

def stamp(A, cfg, idx):
    if cfg.get("stamps"):
        A.e("s_memtime s[%d:%d]" % (60 + 2 * idx, 61 + 2 * idx))

def gen_k3(A, cfg):
    name = "k3_kernel"
    A.e(".p2align 8\n.type %s,@function" % name)
    A.label(name)
    A.e("s_cmp_ge_u32 s2, 256\ns_cbranch_scc1 K3_END")
    stamp(A, cfg, 0)
    if cfg.get("stamps"): A.e("s_memrealtime s[88:89]")
    A.e("s_load_dwordx2 s[48:49], s[0:1], 72\ns_load_dwordx2 s[52:53], s[0:1], 88")
    A.e("v_lshrrev_b32 v1, 6, v0\ns_nop 0\nv_readfirstlane_b32 s24, v1")
    A.e("s_lshr_b32 s25, s2, 2\ns_and_b32 s3, s2, 3\ns_mul_i32 s3, s3, 7\ns_add_u32 s26, s3, s24")
    A.e("s_mul_i32 s27, s25, 0x7000\ns_lshl_b32 s3, s26, 10\ns_add_u32 s27, s27, s3")
    A.e("v_and_b32 v1, 63, v0\nv_lshlrev_b32 v2, 4, v1")
    A.e("s_waitcnt lgkmcnt(0)")
    if cfg.get("wsoff"):
        A.e("s_add_u32 s52, s52, 0x%x\ns_addc_u32 s53, s53, 0" % cfg["wsoff"])
    srd_off(A, 16, 52, WS_ZT, 450 * 4096)
    A.e("v_lshrrev_b32 v3, 2, v1\nv_lshlrev_b32 v3, 12, v3\nv_bfe_u32 v4, v1, 5, 1\nv_lshlrev_b32 v4, 1, v4\nv_and_b32 v5, 3, v1\nv_xor_b32 v4, v4, v5\nv_lshl_add_u32 v3, v4, 4, v3")
    A.e("s_lshl_b32 s29, s25, 6\ns_mul_i32 s3, s24, %d\ns_add_u32 s29, s29, s3\ns_mul_i32 s30, s24, 5120" % (5 * 65536))
    for i in range(5):
        A.e("s_add_u32 m0, s30, %d\ns_nop 0\nbuffer_load_dwordx4 v3, s[16:19], s29 offen lds\ns_add_u32 s29, s29, 0x10000" % (i * 1024))
    srd_off(A, 8, 52, WS_PO, 16 * 64 * 0x7000)
    srd(A, 12, 48, 2048 * 1792)
    for h in range(16):
        A.e("buffer_load_dwordx4 %s, v2, s[8:11], s27 offen" % v(16 + 4 * h, 4))
        if h < 15: A.e("s_add_u32 s27, s27, 0x%x" % (64 * 0x7000))
    A.e("v_and_b32 v3, 31, v1\nv_mul_u32_u24 v3, 1792, v3\nv_lshrrev_b32 v4, 5, v1\nv_lshl_add_u32 v3, v4, 4, v3")
    A.e("s_mul_i32 s28, s25, %d\ns_lshl_b32 s3, s26, 5\ns_add_u32 s28, s28, s3\ns_add_u32 s28, s28, 896" % (32 * 1792))
    A.e("v_and_b32 v4, 15, v1\nv_lshrrev_b32 v5, 4, v1\ns_lshl_b32 s3, s26, 4\nv_add_u32 v6, s3, v4\nv_cvt_f32_u32 v6, v6")
    A.e("v_mul_f32 v80, 0x%x, v6\nv_cvt_f32_u32 v6, v5\nv_mul_f32 v6, 4.0, v6\nv_mul_f32 v81, v6, v80" % f32bits(1.0 / 448))
    A.e("v_bfe_u32 v6, v1, 2, 2\nv_lshl_add_u32 v6, v5, 3, v6\nv_lshlrev_b32 v6, 6, v6\nv_and_b32 v7, 3, v1\nv_lshl_add_u32 v6, v7, 3, v6")
    A.e("v_and_b32 v7, 1, v5\nv_lshl_add_u32 v82, v7, 5, v6\nv_xor_b32 v83, 32, v82")
    A.e("v_bfe_u32 v6, v4, 1, 2\nv_lshlrev_b32 v6, 3, v6\nv_lshrrev_b32 v7, 3, v4\nv_lshl_add_u32 v6, v7, 1, v6\nv_and_b32 v7, 1, v4\nv_add_u32 v6, v6, v7")
    A.e("v_mul_u32_u24 v6, 1792, v6\nv_lshl_add_u32 v84, v5, 3, v6")
    A.e("s_mul_i32 s31, s25, %d\ns_lshl_b32 s3, s26, 5\ns_add_u32 s31, s31, s3\ns_add_u32 s32, s31, %d" % (32 * 1792, 4 * 1792))
    A.e("s_waitcnt vmcnt(16)\ns_barrier")
    for p in range(15):
        fb = 88 + 8 * (p & 1)
        for u in range(2):
            for e in range(2):
                A.e("ds_read_b64_tr_b16 %s, v%d offset:%d" % (v(fb + 4 * u + 2 * e, 2), 82 + u, p * 2048 + e * 256))
        for j in range(4):
            A.e("v_fmamk_f32 v%d, v80, 0x%x, v81" % (8 + j, f32bits(float(16 * p + j))))
        for j in range(4):
            A.e("v_cos_f32 v%d, v%d\nv_sin_f32 v%d, v%d" % (12 + j, 8 + j, 8 + j, 8 + j))
        g0 = 104 + 4 * (p & 1)
        A.e("s_nop 0")
        for j in range(4):
            A.e("v_cvt_pk_bf16_f32 v%d, v%d, -v%d" % (g0 + j, 12 + j, 8 + j))
        A.e("s_waitcnt lgkmcnt(0)\ns_nop 0")
        for u in range(2):
            A.e("v_mfma_f32_16x16x32_bf16 %s, %s, %s, %s" % (v(112 + 4 * u, 4), v(g0, 4), v(fb + 4 * u, 4), "0" if p == 0 else v(112 + 4 * u, 4)))
    A.e("s_nop 7")
    for u in range(2):
        A.e("v_cvt_pk_bf16_f32 v%d, v112, v113\nv_cvt_pk_bf16_f32 v%d, v114, v115".replace("112", str(112 + 4 * u)).replace("113", str(113 + 4 * u)).replace("114", str(114 + 4 * u)).replace("115", str(115 + 4 * u)) % (88 + 2 * u, 89 + 2 * u))
        A.e("buffer_store_dwordx2 %s, v84, s[12:15], s%d offen" % (v(88 + 2 * u, 2), 31 + u))
    stamp(A, cfg, 1)
    for h in range(16):
        A.e("s_waitcnt vmcnt(%d)" % (17 - h))
        for r in range(4):
            src = 16 + 4 * h + r
            if h == 0:
                A.e("v_lshlrev_b32 v%d, 16, v%d\nv_and_b32 v%d, 0xffff0000, v%d" % (8 + 2 * r, src, 9 + 2 * r, src))
            else:
                A.e("v_lshlrev_b32 v6, 16, v%d\nv_and_b32 v7, 0xffff0000, v%d" % (src, src))
                A.e("v_pk_add_f32 %s, %s, v[6:7]" % (v(8 + 2 * r, 2), v(8 + 2 * r, 2)))
    for r in range(4):
        A.e("v_cvt_pk_bf16_f32 v%d, v%d, v%d" % (16 + r, 8 + 2 * r, 9 + 2 * r))
    A.e("s_nop 1\nv_permlane32_swap_b32 v16, v18\nv_permlane32_swap_b32 v17, v19")
    A.e("buffer_store_dwordx4 v[16:19], v3, s[12:15], s28 offen")
    stamp(A, cfg, 2)
    if cfg.get("stamps"):
        A.e("s_waitcnt vmcnt(0)")
        stamp(A, cfg, 3)
        write_stamps(A, 2, 4, 52)
    A.label("K3_END")
    A.e("s_endpgm")
    return kd(name, 128, 128)
```

```python
import sys
from asmlib import *
import k1
HDR = open("concat_heads__spectral_gfnet__compressed_kv_cla__prompt.s.ref").read().split("; Override launch")[0]
def build(cfg):
    A = Asm()
    launches = []
    kds = []
    ks = cfg.get("kernels", "123")
    if "1" in ks:
        launches.append("; @launch kernel=k1_kernel grid=(256,1,1) block=(256,1,1) lds=163840")
        kds.append(k1.gen_k1(A, cfg))
    if "2" in ks:
        import k2
        launches.append("; @launch kernel=k2_kernel grid=(256,1,1) block=(256,1,1) lds=163840")
        kds.append(k2.gen_k2(A, cfg))
    if "3" in ks:
        import k3
        launches.append(k3.LAUNCH)
        kds.append(k3.gen_k3(A, cfg))
    out = HDR + "\n".join(launches) + '\n.amdgcn_target "amdgcn-amd-amdhsa--gfx950"\n.text\n' + A.text()
    out += '.section .rodata,"a"\n' + "".join(kds)
    return out
if __name__ == "__main__":
    cfg = eval(sys.argv[2]) if len(sys.argv) > 2 else {}
    open(sys.argv[1], "w").write(build(cfg))
```

```python
from asmlib import *
import struct
def f32bits(x):
    return struct.unpack('<I', struct.pack('<f', x))[0]

XR = 0
WR = 98304
QSCALE = 0x3db8aa3b

V_VOX = 4
V_VOW = 8
V_XB = 12
V_XR = 14
V_WB = 16
V_ST = 20
V_VA = 21
V_T = 24
FR = 32
QFR = 32
QACC = 128

def stamp(A, cfg, idx):
    if cfg.get("stamps"):
        A.e("s_memtime s[%d:%d]" % (60 + 2 * idx, 61 + 2 * idx))

def x_voffsets(A, stride, rows_per_wave_shift):
    A.e("v_and_b32 v1, 63, v0")
    A.e("v_lshrrev_b32 v2, 3, v1")
    A.e("s_lshl_b32 s3, s24, %d" % rows_per_wave_shift)
    A.e("v_add_u32 v2, s3, v2")
    A.e("v_mul_u32_u24 v2, %d, v2" % stride)
    A.e("v_lshrrev_b32 v3, 4, v1")
    A.e("v_and_b32 v1, 7, v1")
    A.e("v_xor_b32 v1, v1, v3")
    A.e("v_lshlrev_b32 v1, 4, v1")
    for i in range(4):
        if i & 1:
            A.e("v_xor_b32 v3, 64, v1")
            A.e("v_add_u32 v%d, v2, v3" % (V_VOX + i))
        else:
            A.e("v_add_u32 v%d, v2, v1" % (V_VOX + i))
        if i:
            A.e("v_add_u32 v%d, %d, v%d" % (V_VOX + i, i * (8 * stride - 1024), V_VOX + i))

def dma_w(p, fl=''):
    L = ["s_add_u32 m0, s25, %d" % ((p % 4) * 16384)]
    L.append("s_nop 0")
    for j in range(4):
        L.append("buffer_load_dwordx4 v%d, s[12:15], s27 offen offset:%d %s lds" % (V_VOW + j, j * 1024, fl))
    L.append("s_add_u32 s27, s27, 0x40000")
    L.append("s_and_b32 s27, s27, 0x7fffff")
    return L

def dma_x(half, fl=''):
    L = []
    if half == 0:
        L.append("s_add_u32 m0, s29, s33")
        L.append("s_nop 0")
        so = "s28"
    else:
        L.append("s_add_u32 m0, s29, s34")
        L.append("s_add_u32 s35, s28, s32")
        so = "s35"
    for j in range(4):
        L.append("buffer_load_dwordx4 v%d, s[8:11], %s offen offset:%d %s lds" % (V_VOX + j, so, j * 1024, fl))
    if half == 1:
        L.append("s_add_u32 s26, s26, 128")
        L.append("s_and_b32 s26, s26, 0x7ff")
        L.append("s_add_u32 s28, s6, s26")
        L.append("s_add_u32 s29, s29, 0x8000")
        L.append("s_cmp_eq_u32 s29, 0x18000")
        L.append("s_cselect_b32 s29, 0, s29")
    return L

def x_rd_base(p):
    L = []
    if p % 2 == 0:
        L += ["s_add_u32 s30, s30, 0x8000", "s_cmp_eq_u32 s30, 0x18000", "s_cselect_b32 s30, 0, s30"]
    L.append("v_add_u32 v%d, s30, v%d" % (V_XR, V_XB + (p & 1)))
    return L

def kv_reads(p):
    b = FR + 64 * (p & 1)
    X = ["ds_read_b128 %s, v%d offset:%d" % (v(b + 4 * i, 4), V_XR, i * 2048) for i in range(8)]
    W = []
    for i in range(8):
        for e in range(2):
            W.append("ds_read_b64_tr_b16 %s, v%d offset:%d" % (v(b + 32 + 4 * i + 2 * e, 2), V_WB + (i & 3), (p % 4) * 16384 + (i >> 2) * 4096 + e * 512))
    return X, W

def q_reads(p):
    b = QFR + 48 * (p & 1)
    X = ["ds_read_b128 %s, v%d offset:%d" % (v(b + 4 * i, 4), V_XR, i * 2048) for i in range(8)]
    W = []
    for i in range(4):
        for e in range(2):
            W.append("ds_read_b64_tr_b16 %s, v%d offset:%d" % (v(b + 32 + 4 * i + 2 * e, 2), V_WB + i, (p % 4) * 16384 + e * 512))
    return X, W

def kv_period(A, p, isV, extra_pre=None, extra=(), tgap=1, dgaps=None, tail=(), cfg={}):
    b = FR + 64 * (p & 1)
    mf = []
    for i in range(8):
        for j in range(8):
            t = (i * 8 + j) * 4
            if isV:
                ra, rb = b + 4 * i, b + 32 + 4 * j
            else:
                ra, rb = b + 32 + 4 * i, b + 4 * j
            mf.append("v_mfma_f32_16x16x32_bf16 %s, %s, %s, %s" % (a(t, 4), v(ra, 4), v(rb, 4), a(t, 4)))
    X, W = kv_reads(p + 1)
    slots = {}
    slots[-1] = ["s_waitcnt vmcnt(%d) lgkmcnt(0)" % (18 if extra else 16), "s_barrier"]
    place(slots, x_rd_base(p + 1), [0, 0, 1, 1])
    rd = []
    for i in range(8):
        rd += [W[2 * i], W[2 * i + 1], X[i]]
    place(slots, rd, list(range(2, 50, 2)))
    d = dma_w(p, cfg.get('f_w', '')) + dma_x(0 if p % 2 == 1 else 1, cfg.get('f_x', ''))
    d = [x for x in d if x != "s_nop 0"]
    place(slots, d, dgaps or list(range(3, 63, 3)))
    place(slots, list(extra), [tgap, 51, 53])
    place(slots, list(tail), [57, 59, 60, 61][4 - len(tail):])
    if extra_pre:
        A.e(extra_pre)
    interleave(A, mf, slots)

def kv_switch_block(A, lab):
    A.label(lab + "_swx")
    srd(A, 8, 36, 2048 * 896)
    x_voffsets(A, 896, 5)
    A.e("s_and_b32 s3, s55, 15\ns_mul_i32 s28, s3, %d\ns_mov_b32 s6, s28\ns_mov_b32 s26, 0" % (128 * 896))
    A.e("s_lshl_b32 s33, s24, 12\ns_add_u32 s34, s33, 16384\ns_mov_b32 s32, 0x40000000")
    A.e("s_branch %s_swx_back" % lab)

def kv_epilogue(A, isV):
    for a_ in range(4):
        for j in range(8):
            t0 = ((2 * a_) * 8 + j) * 4
            t1 = ((2 * a_ + 1) * 8 + j) * 4
            T = V_T
            for r in range(4):
                A.e("v_accvgpr_read_b32 v%d, a%d" % (T + r, t0 + r))
            for r in range(4):
                A.e("v_accvgpr_read_b32 v%d, a%d" % (T + 4 + r, t1 + r))
            D = 112 + 4 * (j & 3)
            for r in range(4):
                A.e("v_cvt_pk_bf16_f32 v%d, v%d, v%d" % (D + r, T + 2 * r, T + 2 * r + 1))
            if isV:
                off = a_ * 16384 + (j >> 1) * 2048 + (j & 1) * 256
            else:
                off = (j >> 1) * 16384 + a_ * 2048 + (j & 1) * 256
            A.e("s_add_u32 s3, s36, %d" % (off & ~0xfff))
            A.e("buffer_store_dwordx4 %s, v%d, s[16:19], s3 offen offset:%d" % (v(D, 4), V_ST, off & 0xfff))

def a1_ids(A, srb, scb):
    A.e("s_and_b32 s%d, s55, 7\ns_and_b32 s3, s2, 7\ns_lshl_b32 s3, s3, 2\ns_lshr_b32 s%d, s55, 3\ns_add_u32 s%d, s%d, s3" % (scb, srb, srb, srb))

def start_touch(A):
    A.e("s_cmp_eq_u32 s24, 3\ns_cbranch_scc1 K1_tw")
    A.e("v_and_b32 v1, 63, v0\ns_lshr_b32 s3, s55, 3\ns_lshl_b32 s3, s3, 6\nv_add_u32 v1, s3, v1\nv_lshlrev_b32 v1, 11, v1")
    A.e("s_lshl_b32 s3, s24, 7\ns_add_u32 s3, s3, s26\ns_and_b32 s3, s3, 0x7ff\ns_add_u32 s3, s3, s6")
    A.e("buffer_load_dword v23, v1, s[8:11], s3 offen\ns_branch K1_td")
    A.label("K1_tw")
    A.e("v_bfe_u32 v1, v0, 2, 4\ns_lshl_b32 s3, s57, 4\nv_add_u32 v1, s3, v1\nv_lshlrev_b32 v1, 13, v1\nv_and_b32 v2, 3, v0\nv_lshl_add_u32 v1, v2, 7, v1")
    A.e("buffer_load_dword v23, v1, s[12:15], s27 offen")
    A.label("K1_td")

V_TA = 160
def touch_setup(A, cfg):
    def sel(dst, regs):
        A.e("s_mov_b32 s%d, %s" % (dst, regs[0]))
        for w in range(1, 4):
            A.e("s_cmp_eq_u32 s24, %d\ns_cselect_b32 s%d, %s, s%d" % (w, dst, regs[w], dst))
    sel(20, ["s36", "s40", "s46", "s98"]); sel(21, ["s37", "s41", "s47", "s99"])
    sel(22, ["s96", "s40", "s46", "s100"]); sel(23, ["s97", "s41", "s47", "s101"])
    sel(48, ["7168", "14336", "14336", "3600"]); sel(49, ["0", "7168", "7168", "0"]); sel(50, ["3584", "3584", "3584", "0"])
    A.e("s_mul_i32 s3, s2, s48\ns_add_u32 s20, s20, s3\ns_addc_u32 s21, s21, 0\ns_add_u32 s3, s3, s49\ns_add_u32 s22, s22, s3\ns_addc_u32 s23, s23, 0")
    A.e("v_and_b32 v1, 1, v0\nv_mul_lo_u32 v1, s50, v1")
    A.e("v_mov_b32 v2, s20\nv_mov_b32 v3, s21\nv_mov_b32 v24, s22\nv_mov_b32 v25, s23\nv_and_b32 v26, 2, v0\nv_cmp_eq_u32 vcc, 0, v26\ns_nop 1")
    A.e("v_cndmask_b32 v2, v24, v2, vcc\nv_cndmask_b32 v3, v25, v3, vcc")
    A.e("v_add_co_u32 v%d, vcc, v2, v1\ns_nop 1\nv_addc_co_u32 v%d, vcc, 0, v3, vcc\ns_mov_b32 s49, 0" % (V_TA, V_TA + 1))

def touch_items(A, p, cfg={}):
    same = cfg.get("touch_same")
    it = ["global_load_dword v23, v[%d:%d], off offset:%d %s" % (V_TA, V_TA + 1, 0 if same else 128 * p, cfg.get("touch_flags", ""))]
    if p == 3:
        it += [["s_cmp_lt_u32 s31, 6", "s_cselect_b32 s48, %s, 0" % ("0" if same else "0x200")], "v_lshl_add_u64 v[%d:%d], s[48:49], 0, v[%d:%d]" % (V_TA, V_TA + 1, V_TA, V_TA + 1)]
    return it

def gen_k1(A, cfg):
    name = "k1_kernel"
    A.e(".p2align 8\n.type %s,@function" % name)
    A.label(name)
    A.e("s_cmp_ge_u32 s2, 256\ns_cbranch_scc1 K1_END")
    stamp(A, cfg, 0)
    if cfg.get("stamps"): A.e("s_memrealtime s[88:89]")
    A.e("s_load_dwordx16 s[36:51], s[0:1], 24\ns_load_dwordx2 s[52:53], s[0:1], 88")
    A.e("s_load_dwordx4 s[96:99], s[0:1], 0\ns_load_dwordx2 s[100:101], s[0:1], 16")
    code_touch(A, name, "K1_CODE_END", 20, 1, 23, 256)
    A.e("v_lshrrev_b32 v1, 6, v0\ns_nop 0\nv_readfirstlane_b32 s24, v1")
    A.e("s_and_b32 s54, s2, 7\ns_lshr_b32 s55, s2, 3")
    A.e("s_lshr_b32 s3, s55, 4\ns_lshl_b32 s54, s54, 1\ns_add_u32 s54, s54, s3")
    A.e("s_lshr_b32 s56, s55, 3\ns_and_b32 s56, s56, 1")
    A.e("s_and_b32 s57, s55, 7")
    A.e("s_lshl_b32 s25, s24, 12\ns_add_u32 s25, s25, %d" % WR)
    A.e("s_lshl_b32 s33, s24, 13\ns_add_u32 s34, s33, 4096")
    A.e("s_mov_b32 s32, %d" % (32 * 2048))
    A.e("s_lshl_b32 s6, s57, 19")
    A.e("s_lshl_b32 s27, s54, 9")
    if cfg.get("rot", 0):
        A.e("s_and_b32 s3, s2, 7\ns_lshl_b32 s26, s3, 8\ns_lshl_b32 s3, s3, 20\ns_add_u32 s27, s27, s3")
    else:
        A.e("s_mov_b32 s26, 0")
    A.e("s_add_u32 s28, s6, s26")
    A.e("s_mov_b32 s29, 0")
    x_voffsets(A, 2048, 6)
    A.e("v_and_b32 v1, 63, v0\nv_lshrrev_b32 v2, 3, v1\nv_lshlrev_b32 v2, 13, v2")
    A.e("s_lshl_b32 s3, s24, 7\nv_add_u32 v2, s3, v2")
    A.e("v_lshrrev_b32 v3, 3, v1\nv_and_b32 v3, 2, v3\nv_and_b32 v1, 7, v1\nv_xor_b32 v1, v1, v3\nv_lshlrev_b32 v1, 4, v1")
    for j in range(4):
        if j & 1:
            A.e("v_xor_b32 v3, 64, v1\nv_add_u32 v%d, v2, v3" % (V_VOW + j))
        else:
            A.e("v_add_u32 v%d, v2, v1" % (V_VOW + j))
        if j:
            A.e("v_add_u32 v%d, %d, v%d" % (V_VOW + j, j * (65536 - 1024), V_VOW + j))
    A.e("s_waitcnt lgkmcnt(0)")
    stamp(A, cfg, 1)
    if cfg.get("wsoff"):
        A.e("s_add_u32 s52, s52, 0x%x\ns_addc_u32 s53, s53, 0" % cfg["wsoff"])
    srd(A, 8, 38, 2048 * 2048)
    A.e("s_cmp_eq_u32 s56, 0\ns_cselect_b32 s4, s42, s44\ns_cselect_b32 s5, s43, s45")
    srd(A, 12, 4, 1024 * 8192)
    srd(A, 16, 52, 0x3000000)
    srd_off(A, 20, 52, WS_FL, 0x8000)
    A.e("v_mov_b32 v1, 0\nv_lshlrev_b32 v2, 2, v0\ns_lshl_b32 s3, s2, 7\nv_cmp_gt_u32 vcc, 32, v0\ns_and_saveexec_b64 s[4:5], vcc\ns_cbranch_execz K1_nofl")
    A.e("buffer_store_dword v1, v2, s[20:23], s3 offen")
    A.label("K1_nofl")
    A.e("s_mov_b64 exec, s[4:5]")
    if cfg.get("stouch", 1): start_touch(A)
    if cfg.get("stamps") == 3:
        A.e("s_waitcnt vmcnt(1)\ns_memtime s[76:77]\ns_waitcnt vmcnt(0)\ns_memtime s[78:79]")
    for ln in dma_x(0, cfg.get('f_x', '')): A.e(ln)
    for p in range(-4, 0):
        if cfg.get("ltouch", 1) and p >= -2:
            if p == -2: touch_setup(A, cfg)
            A.e(touch_items(A, 0)[0])
        for ln in dma_w(p, cfg.get('f_w', '')): A.e(ln)
        if p == -4 or p == -3:
            for i in range(128 * (p + 4), 128 * (p + 5)):
                A.e("v_accvgpr_write_b32 a%d, 0" % i)
        for ln in dma_x(0 if p % 2 == 1 else 1, cfg.get('f_x', '')): A.e(ln)
        if cfg.get("stamps") == 3:
            A.e("s_memtime s[%d:%d]" % (80 + 2 * (p + 4), 81 + 2 * (p + 4)))
    stamp(A, cfg, 2)
    A.e("v_and_b32 v1, 15, v0\nv_bfe_u32 v2, v0, 4, 2")
    A.e("v_lshrrev_b32 v3, 1, v1\nv_xor_b32 v3, v3, v2\nv_lshlrev_b32 v3, 4, v3")
    A.e("v_lshl_add_u32 v%d, v1, 7, v3" % V_XB)
    A.e("s_lshr_b32 s3, s24, 1\ns_lshl_b32 s58, s3, 14")
    A.e("v_add_u32 v%d, s58, v%d" % (V_XB, V_XB))
    A.e("v_xor_b32 v%d, 64, v%d" % (V_XB + 1, V_XB))
    A.e("v_bfe_u32 v3, v0, 2, 2")
    A.e("v_lshl_add_u32 v%d, v2, 3, v3" % V_T)
    A.e("v_lshlrev_b32 v%d, 7, v%d" % (V_T, V_T))
    A.e("v_and_b32 v%d, 3, v0\nv_lshl_add_u32 v%d, v%d, 3, v%d" % (V_T + 1, V_T, V_T + 1, V_T))
    A.e("v_lshrrev_b32 v3, 1, v3\nv_and_b32 v2, 1, v2\nv_lshl_add_u32 v3, v2, 1, v3")
    A.e("s_and_b32 s3, s24, 1\ns_lshl_b32 s59, s3, 13\ns_add_u32 s3, s59, %d" % WR)
    A.e("v_add_u32 v%d, s3, v%d" % (V_T, V_T))
    for u in range(4):
        A.e("v_xor_b32 v2, %d, v3\nv_lshl_add_u32 v%d, v2, 5, v%d" % (u, V_WB + u, V_T))
    A.e("v_bfe_u32 v2, v0, 4, 2\nv_lshlrev_b32 v2, 9, v2\nv_lshl_add_u32 v%d, v1, 4, v2" % V_ST)
    A.e("s_mov_b32 s30, 0\nv_mov_b32 v%d, v%d" % (V_XR, V_XB))
    stamp(A, cfg, 3)
    A.e("s_waitcnt vmcnt(%d)\ns_barrier" % (26 if cfg.get("ltouch", 1) else 24))
    X, W = kv_reads(0)
    for r in W + X: A.e(r)
    A.e("s_mov_b32 s31, 0\ns_and_b32 s7, s41, 0xffff\ns_lshl_b32 s51, s54, 9")
    stamp(A, cfg, 4)
    A.e("s_cmp_eq_u32 s56, 0\ns_cbranch_scc0 K1_V")
    for isV in (0, 1):
        lab = "K1_V" if isV else "K1_K"
        A.e(".p2align 6") if isV else None
        A.label(lab)
        loop = lab + "_loop"
        A.label(loop)
        for p in range(4):
            pre = None
            tail = []
            if p == 3:
                tail = [["s_cmp_eq_u32 s31, 6", "s_cselect_b32 s12, s40, s12"], ["s_cselect_b32 s13, s7, s13", "s_cselect_b32 s14, 0x%x, s14" % (448 * 8192)],
                        ["s_cselect_b32 s27, s51, s27", "s_add_u32 s31, s31, 1"], "s_cmp_lt_u32 s31, 8"]
            if p == 2:
                tail = ["s_cmp_eq_u32 s31, 6"]
            kv_period(A, p, isV, cfg=cfg, tail=tail, extra=(touch_items(A, p, cfg) if cfg.get('ltouch', 1) else ()), tgap=cfg.get('tgap', 1), dgaps=cfg.get('dgaps'))
            if p == 2:
                A.e("s_cbranch_scc1 %s_swx" % lab)
                A.label(lab + "_swx_back")
        A.e("s_cselect_b32 s12, s40, s12\ns_cselect_b32 s13, s7, s13\ns_cselect_b32 s14, 0x%x, s14\ns_cselect_b32 s27, s51, s27" % (448 * 8192)) if False else None
        if cfg.get("stamps") == 2:
            A.e("s_memtime s[86:87]\ns_waitcnt lgkmcnt(0)\ns_mov_b32 m0, s31\nv_writelane_b32 v15, s86, m0")
        A.e("s_cbranch_scc1 %s" % loop)
        stamp(A, cfg, 5)
        A.e("s_waitcnt lgkmcnt(0)")
        A.e("v_subrev_u32 v%d, s58, v%d\nv_xor_b32 v%d, 64, v%d" % (V_XB, V_XB, V_XB + 1, V_XB))
        A.e("s_lshl_b32 s3, s24, 12\ns_sub_u32 s3, s3, s59")
        for u in range(4):
            A.e("v_add_u32 v%d, s3, v%d" % (V_WB + u, V_WB + u))
        A.e("v_add_u32 v%d, s30, v%d" % (V_XR, V_XB))
        X, W = q_reads(32)
        for r in W + X: A.e(r)
        if not isV:
            A.e("s_mov_b32 s38, 2048\ns_mov_b32 s39, 16384\ns_mov_b32 s37, 0\ns_branch K1_Q")
        else:
            A.e("s_mov_b32 s38, 16384\ns_mov_b32 s39, 2048\ns_mov_b32 s37, 0x%x" % WS_V)
    A.label("K1_Q")
    A.e("s_lshl_b32 s3, s54, 20\ns_add_u32 s37, s37, s3\ns_lshl_b32 s3, s57, 17\ns_add_u32 s37, s37, s3")
    A.e("s_lshr_b32 s3, s24, 1\ns_lshl_b32 s3, s3, 16\ns_add_u32 s37, s37, s3\ns_add_u32 s37, s37, s59\ns_mov_b32 s36, s37")
    a1_ids(A, 40, 41)
    A.e("s_mul_i32 s42, s40, %d" % (64 * 896))
    A.e("v_and_b32 v1, 63, v0\nv_lshrrev_b32 v2, 3, v1\nv_lshlrev_b32 v2, 2, v2\nv_add_u32 v2, s24, v2\nv_mul_u32_u24 v2, 896, v2")
    A.e("v_lshrrev_b32 v3, 4, v1\nv_and_b32 v1, 7, v1\nv_xor_b32 v1, v1, v3\nv_lshlrev_b32 v1, 4, v1")
    A.e("v_add_u32 v%d, v2, v1\nv_xor_b32 v1, 64, v1\nv_add_u32 v%d, v2, v1\nv_add_u32 v%d, %d, v%d" % (V_VA, V_VA + 1, V_VA + 1, 32 * 896 - 1024, V_VA + 1))
    A.e("s_lshl_b32 s43, s24, 11")
    srd(A, 20, 96, 2048 * 896)
    stamp(A, cfg, 6)
    vt = VmTrack()
    for q in (29, 30, 31):
        if cfg.get("ltouch", 1): vt.add(("t", q))
        vt.add(("d", q), 8)
    pieces = []
    for a_ in range(4):
        for j in range(8):
            t0 = ((2 * a_) * 8 + j) * 4
            t1 = ((2 * a_ + 1) * 8 + j) * 4
            T = V_T
            L = []
            for r in range(4): L.append("v_accvgpr_read_b32 v%d, a%d" % (T + r, t0 + r))
            L.append("v_cvt_pk_bf16_f32 v%d, v%d, v%d" % (T, T, T + 1))
            L.append("v_cvt_pk_bf16_f32 v%d, v%d, v%d" % (T + 1, T + 2, T + 3))
            for r in range(4): L.append("v_accvgpr_read_b32 v%d, a%d" % (T + 4 + r, t1 + r))
            L.append("v_cvt_pk_bf16_f32 v%d, v%d, v%d" % (T + 2, T + 4, T + 5))
            L.append("v_cvt_pk_bf16_f32 v%d, v%d, v%d" % (T + 3, T + 6, T + 7))
            L.append("buffer_store_dwordx4 %s, v%d, s[16:19], s36 offen offset:%d %s" % (v(T, 4), V_ST, (j & 1) * 256, cfg.get("kv_flags", "sc1")))
            if j == 7:
                L.append(["s_add_u32 s37, s37, s38", "s_mov_b32 s36, s37"])
            elif j & 1:
                L.append(["s_add_u32 s36, s36, s39", "s_nop 0"])
            else:
                L.append("s_nop 1")
            pieces.append(L)
    stream = [x for p_ in pieces for x in p_]
    NP = cfg.get("epi_periods", 13)
    XA_LDS = [16384, 24576, 49152, 57344, 81920, 90112, 65536]
    for p in range(32, 46):
        b = QFR + 48 * (p & 1)
        mf = []
        for i in range(4):
            for j in range(8):
                t = QACC + (i * 8 + j) * 4
                c = "0" if p == 32 else v(t, 4)
                mf.append("v_mfma_f32_16x16x32_bf16 %s, %s, %s, %s" % (v(t, 4), v(b + 32 + 4 * i, 4), v(b + 4 * j, 4), c))
        slots = {}
        if p < 45:
            n = vt.wait_for(lambda t: t[0] == "d" and t[1] <= p - 3)
            slots[-1] = ["s_waitcnt vmcnt(%d) lgkmcnt(0)" % n, "s_barrier"]
            place(slots, x_rd_base(p + 1), [0, 0, 1, 1])
            X, W = q_reads(p + 1)
            rd = []
            for i in range(4):
                rd += [W[2 * i], X[2 * i], W[2 * i + 1], X[2 * i + 1]]
            place(slots, rd, list(range(2, 26, 3)) + list(range(3, 27, 3)))
            d = []
            adv = ["s_add_u32 s28, s28, 128", "s_add_u32 s29, s29, 0x8000", ["s_cmp_eq_u32 s29, 0x18000", "s_cselect_b32 s29, 0, s29"]]
            if p == 32:
                d += adv
            if p + 4 <= 45:
                d += dma_w(p, cfg.get('f_wq', ''))[:-1]
            if p % 2 == 1 and (p + 1) // 2 + 2 <= 22:
                d += dma_x(0, cfg.get('f_xq', '')) + adv
            xa = {34: 0, 36: 1, 38: 2, 40: 3, 41: 4, 42: 5, 43: 6}.get(p)
            if xa is not None:
                d += ["s_add_u32 m0, s43, %d" % XA_LDS[xa], "s_nop 0"]
                d += ["buffer_load_dwordx4 v%d, s[20:23], s42 offen offset:%d %s lds" % (V_VA + i, i * 1024, cfg.get('f_xa', '')) for i in range(2)]
                d += ["s_add_u32 s42, s42, 128"]
            d = [x for x in d if x != "s_nop 0"]
            place(slots, d, list(range(1, 31, 2)))
        else:
            slots[-1] = ["s_waitcnt lgkmcnt(0)"]
        k = p - 32
        if k < NP:
            lo, hi = (len(stream) * k) // NP, (len(stream) * (k + 1)) // NP
            it = stream[lo:hi]
            place(slots, it, [(i * 32) // len(it) for i in range(len(it))])
        for g in range(-1, 32):
            vt.scan(slots.get(g, []), lambda ln: ("s", p) if "store" in ln else (("a", p) if "s[20:23]" in ln else ("d", p)))
        interleave(A, mf, slots)
    stamp(A, cfg, 7)
    srd(A, 8, 98, 2048 * 450)
    srd(A, 12, 100, 2048 * 450)
    A.e("v_and_b32 v1, 31, v0\nv_bfe_u32 v2, v0, 5, 1\ns_lshl_b32 s3, s41, 5\nv_add_u32 v1, s3, v1")
    A.e("s_lshl_b32 s3, s40, 1\nv_add_u32 v2, s3, v2")
    A.e("v_lshlrev_b32 v22, 13, v1\nv_lshl_add_u32 v22, v2, 7, v22\ns_lshl_b32 s3, s24, 5\nv_add_u32 v22, s3, v22")
    A.e("s_lshl_b32 s3, s24, 7\nv_add_u32 v2, s3, v2\nv_mul_u32_u24 v2, 450, v2\nv_lshl_add_u32 v3, v1, 1, v2")
    A.e("v_mov_b32 v2, 0x7fff0000\nv_cmp_gt_u32 vcc, 225, v1\ns_nop 1\nv_cndmask_b32 v3, v2, v3, vcc")
    for j in range(8):
        k2 = 8 * (j >> 1) + (j & 1)
        A.e("s_mov_b32 s3, %d" % (k2 * 64 * 450))
        A.e("buffer_load_ushort v%d, v3, s[8:11], s3 offen %s\nbuffer_load_ushort v%d, v3, s[12:15], s3 offen %s" % (96 + j, cfg.get('f_fl', ''), 104 + j, cfg.get('f_fl', '')))
        vt.add(("w", 0), 2)
    A.e("s_lshl_b32 s36, s54, 20\ns_and_b32 s3, s55, 15\ns_lshl_b32 s3, s3, 16\ns_add_u32 s36, s36, s3")
    A.e("s_lshl_b32 s3, s24, 12\ns_add_u32 s36, s36, s3\ns_add_u32 s36, s36, 0x%x" % WS_Q)
    A.e("s_mov_b32 s4, 0x%x\ns_mov_b32 s5, s4" % QSCALE)
    for a_ in range(2):
        for j in range(8):
            t0 = QACC + ((2 * a_) * 8 + j) * 4
            t1 = QACC + ((2 * a_ + 1) * 8 + j) * 4
            for t in (t0, t0 + 2, t1, t1 + 2):
                A.e("v_pk_mul_f32 %s, %s, s[4:5]" % (v(t, 2), v(t, 2)))
            D = 32 + 4 * (j & 3)
            A.e("v_cvt_pk_bf16_f32 v%d, v%d, v%d" % (D, t0, t0 + 1))
            A.e("v_cvt_pk_bf16_f32 v%d, v%d, v%d" % (D + 1, t0 + 2, t0 + 3))
            A.e("v_cvt_pk_bf16_f32 v%d, v%d, v%d" % (D + 2, t1, t1 + 1))
            A.e("v_cvt_pk_bf16_f32 v%d, v%d, v%d" % (D + 3, t1 + 2, t1 + 3))
            off = (j >> 1) * 16384 + a_ * 2048 + (j & 1) * 256
            A.e("s_add_u32 s3, s36, %d" % (off & ~0xfff))
            A.e("buffer_store_dwordx4 %s, v%d, s[16:19], s3 offen offset:%d %s" % (v(D, 4), V_ST, off & 0xfff, cfg.get("q_flags", "sc1")))
            vt.add(("s", 99))
    A.e("v_and_b32 v1, 15, v0\nv_bfe_u32 v2, v0, 4, 2\nv_lshrrev_b32 v3, 1, v1")
    A.e("s_lshl_b32 s3, s41, 5\ns_lshl_b32 s4, s24, 3\ns_add_u32 s4, s4, s3\nv_add_u32 v3, s4, v3\nv_cvt_f32_u32 v3, v3")
    A.e("v_mul_f32 v48, 0x%x, v3" % f32bits(1.0 / 448))
    A.e("v_and_b32 v1, 1, v1\nv_cvt_f32_u32 v1, v1\nv_mul_f32 v1, 0x3e800000, v1\nv_lshlrev_b32 v3, 3, v2\nv_cvt_f32_u32 v3, v3")
    A.e("v_fma_f32 v49, v3, v48, v1")
    A.e("s_waitcnt vmcnt(%d)" % vt.wait_for(lambda t: t[0] in "aw"))
    for j in range(8):
        A.e("v_lshl_or_b32 v%d, v%d, 16, v%d" % (96 + j, 104 + j, 96 + j))
    srd_off(A, 8, 52, WS_WT, 225 * 8192)
    A.e("buffer_store_dwordx4 v[96:99], v22, s[8:11], 0 offen\nbuffer_store_dwordx4 v[100:103], v22, s[8:11], 0 offen offset:16")
    A.e("s_barrier")
    for p in range(14):
        base = XA_LDS[p >> 1]
        fb = 64 + 16 * (p & 1)
        if base >= 65536 and (p == 0 or XA_LDS[(p - 1) >> 1] < 65536):
            A.e("v_add_u32 v%d, 0x10000, v%d\nv_add_u32 v%d, 0x10000, v%d" % (V_XB, V_XB, V_XB + 1, V_XB + 1))
        for j in range(4):
            A.e("ds_read_b128 %s, v%d offset:%d" % (v(fb + 4 * j, 4), V_XB + (p & 1), (base & 0xffff) + j * 2048))
        for j in range(8):
            A.e("v_fmamk_f32 v%d, v48, 0x%x, v49" % (52 + j, f32bits(float(32 * p + j))))
        for j in range(8):
            A.e("v_cos_f32 v%d, v%d" % (52 + j, 52 + j))
        g0 = 60 if p & 1 else 112
        for j in range(4):
            A.e("v_cvt_pk_bf16_f32 v%d, v%d, v%d" % (g0 + j, 52 + 2 * j, 53 + 2 * j))
        A.e("s_waitcnt lgkmcnt(0)\ns_nop 0")
        for j in range(4):
            A.e("v_mfma_f32_16x16x32_bf16 %s, %s, %s, %s" % (v(128 + 4 * j, 4), v(g0, 4), v(fb + 4 * j, 4), "0" if p == 0 else v(128 + 4 * j, 4)))
    srd_off(A, 12, 52, WS_X1, 225 * 8192)
    A.e("v_and_b32 v1, 15, v0\nv_lshlrev_b32 v1, 4, v1\nv_lshl_add_u32 v1, v2, 14, v1")
    A.e("s_lshl_b32 s4, s4, 13\ns_lshl_b32 s3, s40, 8\ns_add_u32 s4, s4, s3\ns_add_u32 s5, s4, 8192\ns_nop 3")
    for u in range(2):
        for j in range(4):
            A.e("v_cvt_pk_bf16_f32 v%d, v%d, v%d" % (32 + 4 * u + j, 128 + 4 * j + 2 * u, 129 + 4 * j + 2 * u))
        A.e("buffer_store_dwordx4 %s, v1, s[12:15], s%d offen" % (v(32 + 4 * u, 4), 4 + u))
    if cfg.get("stamps") == 3:
        A.e("s_mov_b32 s4, s76\ns_mov_b32 s5, s78")
    stamp(A, cfg, 8)
    if cfg.get("stamps"):
        A.e("s_waitcnt vmcnt(0)")
        stamp(A, cfg, 9)
        if cfg.get("stamps") == 3:
            A.e("s_mov_b32 s76, s68\ns_mov_b32 s64, s4\ns_mov_b32 s66, s5\ns_mov_b32 s68, s80\ns_mov_b32 s70, s82\ns_mov_b32 s72, s84\ns_mov_b32 s74, s86")
        if cfg.get("stamps") == 2:
            A.e("s_mov_b32 s60, s68")
            for i in range(8):
                A.e("v_readlane_b32 s%d, v15, %d" % (62 + 2 * i, i))
            A.e("s_nop 4")
        write_stamps(A, 0, 10, 52)
    A.label("K1_END")
    A.e("s_endpgm")
    kv_switch_block(A, "K1_K")
    kv_switch_block(A, "K1_V")
    A.label("K1_CODE_END")
    return kd(name, 512, 256)

def write_stamps(A, kidx, n, wsp):
    A.e("s_memrealtime s[90:91]\ns_waitcnt lgkmcnt(0)")
    srd_off(A, 92, wsp, WS_STAMP + kidx * 0x40000, 0x40000)
    A.e("s_lshl_b32 s3, s2, 3\ns_add_u32 s3, s3, s24\ns_lshl_b32 s3, s3, 6")
    A.e("v_mov_b32 v1, 0\ns_mov_b64 exec, 1")
    for i in range(n):
        A.e("v_mov_b32 v2, s%d\nbuffer_store_dword v2, v1, s[92:95], s3 offen offset:%d" % (60 + 2 * i, 4 * i))
    A.e("v_mov_b32 v2, s90\nbuffer_store_dword v2, v1, s[92:95], s3 offen offset:60")
    A.e("v_mov_b32 v2, s88\nbuffer_store_dword v2, v1, s[92:95], s3 offen offset:56")
```

```python
from asmlib import *
from k1 import write_stamps, f32bits

V_VO = 4
V_RD = 8
V_L16 = 9
V_WB = 10
V_WR = 12
V_L = 14
V_MX = 15
V_M = 16
V_QM = 17
V_T = 18
V_E = 32
V_P = 48
V_NM = 64
V_S = 80
V_MK = 96
V_NMM = 112
V_WO = 30
V_L8 = 31
V_O = 128
A_Q = 0
A_PB = 64
A_F = 128
S_W = 24; S_N = 25; S_NW = 26; S_DIAG = 27; S_F = 28; S_N1 = 29; S_NSW = 30; S_K = 31; S_VV = 32; S_DK = 33; S_DV = 34
S_WS = 35; S_RS = 36; S_HB = 37; S_REM = 38; S_SEG = 39; S_W4 = 40; S_PO = 41; S_OP = 42; S_FLG = 43; S_Q2 = 44; S_N2 = 45; S_I = 46; S_HEAD = 47
S_WLIM = 56; S_EV = 50; S_FX = 51; S_FM = 54; S_FF = 82; S_AUX = 83; S_WANT = 84; S_PRE = 85
NEG_INF = 0xff800000
THR = 0x41000000

def stamp(A, cfg, idx):
    if cfg.get("stamps"):
        A.e("s_memtime s[%d:%d]" % (60 + 2 * idx, 61 + 2 * idx))

def cstamp(A, cfg, idx, seg):
    if cfg.get("stamps") == 4:
        sk = A.new("K2_cs")
        A.e("s_cmp_eq_u32 s%d, %d\ns_cbranch_scc0 %s\ns_memtime s[%d:%d]" % (S_SEG, seg, sk, 60 + 2 * idx, 61 + 2 * idx))
        A.label(sk)

def fill_items():
    L = ["s_mov_b32 m0, s%d" % S_WS]
    L.append("s_add_u32 s%d, s%d, 1" % (S_F, S_F))
    for j in range(4):
        L.append("buffer_load_dwordx4 v%d, s[8:11], s%d offen offset:%d lds" % (V_VO + j, S_K, j * 1024))
    L.append("s_add_u32 m0, s%d, 0x4000" % S_WS)
    L.append("s_add_u32 s%d, s%d, 0x8000" % (S_WS, S_WS))
    for j in range(4):
        L.append("buffer_load_dwordx4 v%d, s[8:11], s%d offen offset:%d lds" % (V_VO + j, S_VV, j * 1024))
    L.append(["s_cmp_eq_u32 s%d, s%d" % (S_WS, S_WLIM), "s_cselect_b32 s%d, s%d, s%d" % (S_WS, S_W4, S_WS)])
    L.append(["s_add_u32 s%d, s%d, s%d" % (S_VV, S_K, S_DV), "s_add_u32 s%d, s%d, s%d" % (S_K, S_K, S_DK)])
    L.append(["s_cmp_eq_u32 s%d, s%d" % (S_F, S_N1), "s_cselect_b32 s%d, s%d, s%d" % (S_K, S_HB, S_K)])
    return L

def flat(L):
    o = []
    for x in L:
        if isinstance(x, (list, tuple)): o.extend(x)
        else: o.append(x)
    return o

def switch_check(A, jump=False):
    if jump:
        A.e("s_cmp_eq_u32 s%d, s%d\ns_cselect_b32 s%d, s%d, s%d" % (S_F, S_N1, S_K, S_HB, S_K))
    back = A.new("K2_swb")
    A.e("s_cmp_eq_u32 s%d, s%d" % (S_F, S_NSW))
    A.e("s_cbranch_scc0 %s" % back)
    A.e("s_getpc_b64 s[58:59]\ns_add_u32 s58, s58, 12\ns_addc_u32 s59, s59, 0\ns_branch K2_switch")
    A.label(back)

def rd_advance():
    return [["s_add_u32 s%d, s%d, 0x8000" % (S_RS, S_RS), "s_cmp_eq_u32 s%d, 0x28000" % S_RS],
            ["s_cselect_b32 s%d, 0, s%d" % (S_RS, S_RS), "v_add_u32 v%d, s%d, v%d" % (V_RD, S_RS, V_L16)]]

def frag(m):
    return a(A_F + 4 * (m % 16), 4)
def rd(m):
    return "ds_read_b128 %s, v%d offset:%d" % (frag(m), V_RD, (m % 32) * 1024)

def qk_mfma(s_):
    c = v(V_NM, 16) if s_ == 0 else v(V_S, 16)
    return "v_mfma_f32_32x32x16_bf16 %s, %s, %s, %s" % (v(V_S, 16), frag(s_), a(A_Q + 4 * s_, 4), c)
def pv_mfma(m):
    dt, ks = m >> 1, m & 1
    return "v_mfma_f32_32x32x16_bf16 %s, %s, %s, %s" % (v(V_O + 16 * dt, 16), frag(16 + m), v(V_P + 4 * ks, 4), v(V_O + 16 * dt, 16))

PK = [0, 2, 8, 10, 4, 6, 12, 14]
def finish_items():
    adds = ["v_add_f32 v%d, v%d, v%d" % (V_L, V_L, V_E + r) for r in range(16)]
    cv = ["v_cvt_pk_bf16_f32 v%d, v%d, v%d" % (V_P + i, V_E + PK[i], V_E + PK[i] + 1) for i in range(8)]
    return adds, cv
def max_items():
    L = ["v_max3_f32 v%d, v%d, v%d, v%d" % (V_MX, V_S, V_S + 1, V_S + 2)]
    for r in range(3, 15, 2):
        L.append("v_max3_f32 v%d, v%d, v%d, v%d" % (V_MX, V_MX, V_S + r, V_S + r + 1))
    L.append("v_max_f32 v%d, v%d, v%d" % (V_MX, V_MX, V_S + 15))
    return L

def cross_half(A, op, dst, src):
    A.e("v_mov_b32 v%d, v%d\nv_mov_b32 v%d, v%d\ns_nop 1" % (V_T, src, V_T + 1, src))
    A.e("v_permlane32_swap_b32 v%d, v%d\ns_nop 1" % (V_T, V_T + 1))
    A.e("%s v%d, v%d, v%d" % (op, dst, V_T, V_T + 1))

def apply_mask(A):
    A.e("v_mov_b32 v%d, 0x%x" % (V_T, NEG_INF))
    for r in range(16):
        kv = (r & 3) + 8 * (r >> 2)
        A.e("v_cmp_le_i32 vcc, %d, v%d\ns_nop 1\nv_cndmask_b32 v%d, v%d, v%d, vcc" % (kv, V_QM, V_NM + r, V_T, V_NM + r))

A2_IN = 0x20000
A2_EX = 0x22000
R_W = 32
R_C64 = 40; R_S64 = 48
R_C32 = 56; R_S32 = 64; R_N32 = 72
R_TC = 80; R_TS = 88
R_A = 96
R_D1 = 128; R_D2 = 144
R_YR = 160; R_YI = 168
R_BR = 176; R_BI = 180
R_ZR = 184; R_ZI = 192
R_TMP = 200

def a2_loads(A):
    srd_off(A, 4, 52, WS_X1, 225 * 8192)
    A.e("v_lshrrev_b32 v2, 3, v%d\nv_and_b32 v2, 32, v2\nv_xor_b32 v2, v2, v%d" % (V_L16, V_L16))
    A.e("v_xor_b32 v3, 64, v2")
    A.e("s_lshl_b32 s3, s%d, 11\ns_add_u32 m0, s3, %d\ns_lshl_b32 s55, s2, 13\ns_add_u32 s3, s3, s55" % (S_W, A2_IN))
    A.e("buffer_load_dwordx4 v2, s[4:7], s3 offen lds\nbuffer_load_dwordx4 v3, s[4:7], s3 offen offset:1024 lds")
    srd_off(A, 4, 52, WS_WT, 225 * 8192)
    A.e("v_and_b32 v2, 15, v1\nv_lshrrev_b32 v3, 4, v1\nv_lshlrev_b32 v3, 5, v3\nv_lshl_add_u32 v2, v2, 7, v3")
    A.e("buffer_load_dwordx4 %s, v2, s[4:7], s3 offen\nbuffer_load_dwordx4 %s, v2, s[4:7], s3 offen offset:16" % (v(R_W, 4), v(R_W + 4, 4)))

def trig_frag(A, dc, ds, step, base, consts):
    T = R_TMP
    for j in range(8):
        A.e("v_fmamk_f32 v%d, v%d, 0x%x, v%d" % (T + j, step, f32bits(float(consts[j])), base))
    for j in range(8):
        A.e("v_cos_f32 v%d, v%d\nv_sin_f32 v%d, v%d" % (T + 8 + j, T + j, T + j, T + j))
    for j in range(4):
        A.e("v_cvt_pk_bf16_f32 v%d, v%d, v%d" % (dc + j, T + 8 + 2 * j, T + 9 + 2 * j))
    for j in range(4):
        A.e("v_cvt_pk_bf16_f32 v%d, v%d, v%d" % (ds + j, T + 2 * j, T + 1 + 2 * j))

def a2_big(A, rb, off):
    for t in range(4):
        for p in range(2):
            for e in range(2):
                A.e("ds_read_b64_tr_b16 %s, v%d offset:%d" % (v(R_A + 4 * (2 * t + p) + 2 * e, 2), rb + t, off + p * 4096 + e * 512))
    for t in range(4):
        A.e("s_waitcnt lgkmcnt(%d)" % (12 - 4 * t))
        for p in range(2):
            for (d, f) in ((R_D1, R_C64), (R_D2, R_S64)):
                A.e("v_mfma_f32_16x16x32_bf16 %s, %s, %s, %s" % (v(d + 4 * t, 4), v(R_A + 4 * (2 * t + p), 4), v(f + 4 * p, 4), "0" if p == 0 else v(d + 4 * t, 4)))
    A.e("s_nop 7")

def a2_small(A, sr, si):
    A.e("s_nop 1")
    for T in range(2):
        A.e("v_mfma_f32_16x16x32_bf16 %s, %s, %s, 0" % (v(R_ZR + 4 * T, 4), v(R_C32 + 4 * T, 4), v(R_BR, 4)))
        A.e("v_mfma_f32_16x16x32_bf16 %s, %s, %s, 0" % (v(R_ZI + 4 * T, 4), v(R_C32 + 4 * T, 4), v(R_BI, 4)))
    for T in range(2):
        A.e("v_mfma_f32_16x16x32_bf16 %s, %s, %s, %s" % (v(R_ZR + 4 * T, 4), v(sr + 4 * T, 4), v(R_BI, 4), v(R_ZR + 4 * T, 4)))
        A.e("v_mfma_f32_16x16x32_bf16 %s, %s, %s, %s" % (v(R_ZI + 4 * T, 4), v(si + 4 * T, 4), v(R_BR, 4), v(R_ZI + 4 * T, 4)))
    A.e("s_nop 7")

def cmul(A, dr, di, xr, xi, c, s_, conj):
    A.e("v_mul_f32 v%d, v%d, v%d\nv_mul_f32 v%d, v%d, v%d" % (dr, xr, c, di, xi, c))
    A.e("v_fma_f32 v%d, %sv%d, v%d, v%d" % (dr, "" if conj else "-", xi, s_, dr))
    A.e("v_fma_f32 v%d, %sv%d, v%d, v%d" % (di, "-" if conj else "", xr, s_, di))

def pack_b(A, r, i):
    for j in range(4):
        A.e("v_cvt_pk_bf16_f32 v%d, v%d, v%d" % (R_BR + j, r + 2 * j, r + 2 * j + 1))
        A.e("v_cvt_pk_bf16_f32 v%d, v%d, v%d" % (R_BI + j, i + 2 * j, i + 2 * j + 1))

def a2_body(A, cfg):
    T = V_T
    A.e("v_and_b32 v2, 15, v1\nv_lshrrev_b32 v3, 4, v1")
    A.e("s_lshl_b32 s3, s%d, 4\nv_add_u32 v%d, s3, v2\nv_cvt_f32_u32 v%d, v%d" % (S_W, T + 6, T, T + 6))
    A.e("v_cvt_f32_u32 v%d, v3" % (T + 1))
    A.e("v_mul_f32 v%d, 0x%x, v%d" % (T + 2, f32bits(1 / 64), T))
    A.e("v_mul_f32 v%d, v%d, v%d\nv_mul_f32 v%d, 0x41000000, v%d" % (T + 3, T + 1, T + 2, T + 3, T + 3))
    for p in range(2):
        trig_frag(A, R_C64 + 4 * p, R_S64 + 4 * p, T + 2, T + 3, [32 * p + j for j in range(8)])
    nj = [8 * (j >> 1) + (j & 1) for j in range(8)]
    A.e("v_mul_f32 v%d, 0x%x, v%d" % (T + 2, f32bits(1 / 2048), T))
    A.e("v_mul_f32 v%d, v%d, v%d\nv_add_f32 v%d, v%d, v%d" % (T + 3, T + 1, T + 2, T + 3, T + 3, T + 3))
    for j in range(8):
        A.e("v_fmamk_f32 v%d, v%d, 0x%x, v%d" % (R_TS + j, T + 2, f32bits(float(nj[j])), T + 3))
    for j in range(8):
        A.e("v_cos_f32 v%d, v%d\nv_sin_f32 v%d, v%d" % (R_TC + j, R_TS + j, R_TS + j, R_TS + j))
    A.e("v_bfe_u32 v%d, v2, 1, 1\nv_lshlrev_b32 v%d, 3, v%d\nv_lshrrev_b32 v%d, 2, v2\nv_lshl_add_u32 v%d, v%d, 1, v%d" % (T + 4, T + 4, T + 4, T + 5, T + 4, T + 5, T + 4))
    A.e("v_and_b32 v%d, 1, v2\nv_add_u32 v%d, v%d, v%d\nv_cvt_f32_u32 v%d, v%d" % (T + 5, T + 4, T + 4, T + 5, T + 4, T + 4))
    for Tt in range(2):
        A.e("v_add_f32 v%d, 0x%x, v%d\nv_mul_f32 v%d, 0x%x, v%d" % (T + 2, f32bits(16.0 * Tt), T + 4, T + 2, f32bits(1 / 32), T + 2))
        A.e("v_mul_f32 v%d, v%d, v%d\nv_add_f32 v%d, v%d, v%d" % (T + 3, T + 1, T + 2, T + 3, T + 3, T + 3))
        trig_frag(A, R_C32 + 4 * Tt, R_S32 + 4 * Tt, T + 2, T + 3, nj)
    for j in range(8):
        A.e("v_xor_b32 v%d, 0x80008000, v%d" % (R_N32 + j, R_S32 + j))
    RB = R_TMP + 16; WBs = R_TMP + 20
    A.e("v_bfe_u32 v%d, v1, 2, 2\nv_lshl_add_u32 v%d, v3, 3, v%d\nv_lshlrev_b32 v%d, 7, v%d" % (T, T + 1, T, T + 1, T + 1))
    A.e("v_and_b32 v%d, 3, v1\nv_lshl_add_u32 v%d, v%d, 3, v%d\nv_add_u32 v%d, 0x%x, v%d" % (T + 2, T + 1, T + 2, T + 1, T + 1, A2_IN, T + 1))
    A.e("v_lshrrev_b32 v%d, 1, v%d\nv_and_b32 v%d, 1, v3\nv_lshl_add_u32 v%d, v%d, 1, v%d" % (T, T, T + 2, T, T + 2, T))
    for t in range(4):
        A.e("v_xor_b32 v%d, %d, v%d\nv_lshl_add_u32 v%d, v%d, 5, v%d" % (T + 2, t, T, RB + t, T + 2, T + 1))
    A.e("v_lshlrev_b32 v%d, 7, v%d\nv_lshl_add_u32 v%d, v3, 3, v%d\nv_add_u32 v%d, 0x%x, v%d" % (T + 1, T + 6, T + 1, T + 1, T + 1, A2_EX, T + 1))
    A.e("v_bfe_u32 v%d, v2, 1, 1\nv_bfe_u32 v%d, v2, 3, 1\nv_lshl_add_u32 v%d, v%d, 1, v%d" % (T, T + 2, T, T + 2, T))
    for t in range(4):
        A.e("v_xor_b32 v%d, %d, v%d\nv_lshl_add_u32 v%d, v%d, 5, v%d" % (T + 2, t, T, WBs + t, T + 2, T + 1))
    A.e("v_mul_u32_u24 v%d, %d, v%d\nv_lshl_add_u32 v%d, v3, 4, v%d" % (T + 7, 450 * 64, T + 6, T + 7, T + 7))
    sc = 1.0 / (2048 * 448)
    A.e("s_mov_b32 s57, 0x%x\ns_cmp_eq_u32 s2, 0\ns_cselect_b32 s57, 0x%x, s57\ns_cmp_eq_u32 s2, 224\ns_cselect_b32 s57, 0x%x, s57" % (f32bits(2 * sc), f32bits(sc), f32bits(sc)))
    A.e("@WAIT_A2\ns_barrier")
    a2_big(A, RB, 0)
    for j in range(8):
        q = 4 * (j >> 1) + 2 * (j & 1)
        A.e("v_add_f32 v%d, v%d, v%d\nv_sub_f32 v%d, v%d, v%d" % (R_D1 + q, R_D1 + q, R_D2 + q + 1, R_D1 + q + 1, R_D1 + q + 1, R_D2 + q))
        cmul(A, R_YR + j, R_YI + j, R_D1 + q, R_D1 + q + 1, R_TC + j, R_TS + j, True)
    pack_b(A, R_YR, R_YI)
    a2_small(A, R_S32, R_N32)
    for j in range(8):
        A.e("v_lshlrev_b32 v%d, 16, v%d\nv_and_b32 v%d, 0xffff0000, v%d" % (T, R_W + j, T + 1, R_W + j))
        A.e("v_mul_f32 v%d, s57, v%d\nv_mul_f32 v%d, s57, v%d" % (T, T, T + 1, T + 1))
        cmul(A, R_YR + j, R_YI + j, R_ZR + j, R_ZI + j, T, T + 1, False)
    pack_b(A, R_YR, R_YI)
    a2_small(A, R_N32, R_S32)
    for j in range(8):
        cmul(A, R_YR + j, R_YI + j, R_ZR + j, R_ZI + j, R_TC + j, R_TS + j, False)
        A.e("v_cvt_pk_bf16_f32 v%d, v%d, v%d" % (R_D1 + j, R_YR + j, R_YI + j))
    for t in range(4):
        A.e("ds_write_b64 v%d, %s" % (WBs + t, v(R_D1 + 2 * t, 2)))
    A.e("s_waitcnt lgkmcnt(0)\ns_barrier")
    a2_big(A, RB, A2_EX - A2_IN)
    for j in range(8):
        q = 4 * (j >> 1) + 2 * (j & 1)
        A.e("v_sub_f32 v%d, v%d, v%d\nv_add_f32 v%d, v%d, v%d" % (R_YR + j, R_D1 + q, R_D2 + q + 1, R_YI + j, R_D1 + q + 1, R_D2 + q))
    pack_b(A, R_YR, R_YI)
    srd_off(A, 4, 52, WS_ZT, 450 * 4096)
    A.e("s_lshl_b32 s3, s2, 7")
    A.e("buffer_store_dwordx4 %s, v%d, s[4:7], s3 offen\nbuffer_store_dwordx4 %s, v%d, s[4:7], s3 offen offset:64" % (v(R_BR, 4), T + 7, v(R_BI, 4), T + 7))

def flag_store(A):
    srd_off(A, 4, 52, WS_FL, 0x8000)
    A.e("v_mov_b32 v2, 1\nv_mov_b32 v3, s%d\ns_mov_b64 exec, 1" % S_FLG)
    A.e("buffer_store_dword v2, v3, s[4:7], 0 offen sc1\ns_mov_b64 exec, -1\ns_mov_b32 s%d, -1" % S_FF)

def switch_body(A):
    srd(A, 8, 48, 16 * 256 * 896)
    for j in range(4):
        A.e("v_add_u32 v%d, %d, v%d" % (V_VO + j, j * (8 * 896 - 1024), V_WO))
    A.e("s_mul_i32 s%d, s%d, %d\ns_add_u32 s%d, s%d, %d" % (S_K, S_HEAD, 256 * 896, S_VV, S_K, 128 * 896))
    A.e("s_mov_b32 s%d, 128\ns_mov_b32 s%d, %d" % (S_DK, S_DV, 128 * 896 + 128))

def gen_k2(A, cfg):
    D = cfg.get("rdist", 8); WP = cfg.get("wper", 4)
    SPLIT = cfg.get("split", [34] * 8); UN = cfg.get("unroll", 2)
    name = "k2_kernel"
    A.e(".p2align 8\n.type %s,@function" % name)
    A.label(name)
    A.e("s_cmp_ge_u32 s2, 256\ns_cbranch_scc1 K2_END")
    if cfg.get('stamps') != 4: stamp(A, cfg, 0)
    if cfg.get("stamps"): A.e("s_memrealtime s[88:89]")
    A.e("s_load_dwordx2 s[48:49], s[0:1], 64\ns_load_dwordx2 s[52:53], s[0:1], 88")
    code_touch(A, name, "K2_CODE_END", 20, 1, 27, 256)
    A.e("v_lshrrev_b32 v1, 6, v0\ns_nop 0\nv_readfirstlane_b32 s%d, v1" % S_W)
    A.e("s_and_b32 s3, s2, 7\ns_lshr_b32 s4, s2, 3\ns_lshr_b32 s5, s4, 4\ns_lshl_b32 s3, s3, 1\ns_add_u32 s%d, s3, s5" % S_HEAD)
    A.e("s_bfe_u32 s%d, s4, 0x30001" % S_I)
    A.e("s_and_b32 s%d, s4, 1" % S_SEG)
    A.e("s_lshl_b32 s%d, s%d, 20" % (S_HB, S_HEAD))
    A.e("s_lshl_b32 s%d, s%d, 12\ns_add_u32 s%d, s%d, 0x28000\ns_mov_b32 s%d, s%d" % (S_W4, S_W, S_WLIM, S_W4, S_WS, S_W4))
    A.e("s_sub_u32 s5, 15, s%d" % S_I)
    A.e("s_lshl_b32 s3, s%d, 3\ns_add_u32 s3, s3, s%d\ns_lshl_b32 s3, s3, 2\ns_add_u32 s3, s3, s%d" % (S_HEAD, S_I, S_W))
    A.e("s_mul_i32 s%d, s3, 0x4400\ns_lshl_b32 s%d, s3, 6" % (S_OP, S_FLG))
    A.e("s_lshl_b32 s6, s5, 2\ns_add_u32 s7, s6, 4")
    packed = sum((SPLIT[i] - 32) << (4 * i) for i in range(8))
    A.e("s_lshl_b32 s3, s%d, 2\ns_lshr_b32 s3, 0x%x, s3\ns_and_b32 s3, s3, 15\ns_add_u32 s3, s3, 32" % (S_I, packed))
    A.e("s_cmp_eq_u32 s%d, 1" % S_SEG)
    A.e("s_cselect_b32 s50, 0, s3\ns_cselect_b32 s51, s3, s7")
    A.e("s_lshl_b32 s3, s%d, 2\ns_add_u32 s3, s3, 4\ns_cmp_eq_u32 s%d, 1\ns_cselect_b32 s%d, 0, s3" % (S_I, S_SEG, S_N2))
    A.e("s_sub_u32 s%d, s51, s50\ns_mov_b32 s%d, s%d" % (S_N, S_N1, S_N))
    A.e("s_add_u32 s%d, s%d, s%d\ns_add_u32 s%d, s%d, 1" % (S_NSW, S_N1, S_N2, S_NSW, S_NSW))
    A.e("s_add_u32 s6, s6, s%d\ns_add_u32 s6, s6, 1" % S_W)
    A.e("s_cmp_le_u32 s6, s51\ns_cselect_b32 s%d, 1, 0" % S_DIAG)
    A.e("s_min_u32 s6, s6, s51\ns_max_u32 s6, s6, s50\ns_sub_u32 s%d, s6, s50" % S_NW)
    A.e("s_lshl_b32 s6, s5, 2\ns_add_u32 s6, s6, s%d\ns_lshl_b32 s7, s6, 14\ns_add_u32 s54, s7, s%d\ns_add_u32 s54, s54, 0x%x" % (S_W, S_HB, WS_Q))
    A.e("s_lshl_b32 s7, s%d, 2\ns_add_u32 s7, s7, s%d\ns_lshl_b32 s3, s7, 14\ns_add_u32 s%d, s3, s%d\ns_add_u32 s%d, s%d, 0x%x" % (S_I, S_W, S_Q2, S_HB, S_Q2, S_Q2, WS_Q))
    A.e("s_cmp_eq_u32 s%d, 1\ns_cselect_b32 s6, s6, s7\ns_lshl_b32 s3, s%d, 6\ns_add_u32 s6, s6, s3\ns_mul_i32 s%d, s6, 0x7000" % (S_SEG, S_HEAD, S_PO))
    A.e("s_lshl_b32 s%d, s50, 14\ns_add_u32 s%d, s%d, s%d" % (S_K, S_K, S_K, S_HB))
    A.e("s_mov_b32 s%d, 0x4000\ns_mov_b32 s%d, 0x%x\ns_mov_b32 s%d, 0\ns_mov_b32 s%d, 0\ns_mov_b32 s%d, 0x7ffff000" % (S_DK, S_DV, WS_V, S_F, S_RS, S_VV))
    A.e("v_and_b32 v1, 63, v0\nv_lshlrev_b32 v%d, 4, v1\nv_mov_b32 v%d, v%d" % (V_L16, V_RD, V_L16))
    A.e("v_add_u32 v%d, s%d, v%d" % (V_VO, S_W4, V_L16))
    for j in range(1, 4): A.e("v_mov_b32 v%d, v%d" % (V_VO + j, V_VO))
    A.e("s_waitcnt lgkmcnt(0)")
    if cfg.get("wsoff"):
        A.e("s_add_u32 s52, s52, 0x%x\ns_addc_u32 s53, s53, 0" % cfg["wsoff"])
    srd(A, 8, 52, 0x3000000)
    srd(A, 12, 52, WS_OP + 512 * 0x4400)
    srd_off(A, 16, 52, WS_PO, 16 * 64 * 0x7000)
    def q_loads(so):
        for s_ in range(16):
            if s_ % 4 == 0 and s_:
                A.e("s_add_u32 s%d, s%d, 0x1000" % (so, so))
            A.e("buffer_load_dwordx4 %s, v%d, s[12:15], s%d offen offset:%d" % (a(A_Q + 4 * s_, 4), V_L16, so, (s_ % 4) * 1024))
    def q_lines(so):
        L = []
        for s_ in range(16):
            g = []
            if s_ % 4 == 0 and s_:
                g.append("s_add_u32 s%d, s%d, 0x1000" % (so, so))
            g.append("buffer_load_dwordx4 %s, v%d, s[12:15], s%d offen offset:%d" % (a(A_Q + 4 * s_, 4), V_L16, so, (s_ % 4) * 1024))
            L.append(g)
        return L
    def lane_consts():
        A.e("v_and_b32 v2, 31, v1\nv_lshrrev_b32 v3, 5, v1\nv_lshlrev_b32 v3, 2, v3\nv_sub_u32 v%d, v2, v3" % V_QM)
        A.e("v_bfe_u32 v2, v1, 2, 2\nv_add_u32 v3, v3, v2\nv_lshlrev_b32 v3, 7, v3")
        A.e("v_lshrrev_b32 v2, 1, v2\nv_lshl_add_u32 v3, v2, 6, v3")
        A.e("v_bfe_u32 v2, v1, 4, 1\nv_lshl_add_u32 v3, v2, 5, v3\nv_and_b32 v2, 3, v1\nv_lshl_add_u32 v%d, v2, 3, v3" % V_WB)
        A.e("v_xor_b32 v%d, 64, v%d" % (V_WB + 1, V_WB))
        A.e("s_mov_b32 s%d, -1\ns_mov_b32 s%d, 0\ns_add_u32 s%d, s%d, 0x%x" % (S_FF, S_PRE, S_OP, S_OP, WS_OP))
        A.e("s_cmp_eq_u32 s%d, 1\ns_cselect_b32 s%d, s%d, s%d\ns_mov_b32 s%d, s%d" % (S_SEG, S_AUX, S_OP, S_Q2, S_WANT, S_SEG))
        A.e("v_lshrrev_b32 v2, 3, v1\ns_lshl_b32 s3, s%d, 5\nv_add_u32 v2, s3, v2\nv_mul_u32_u24 v2, 896, v2" % S_W)
        A.e("v_bfe_u32 v3, v1, 4, 1\nv_lshlrev_b32 v3, 2, v3\nv_and_b32 v%d, 7, v1\nv_xor_b32 v3, v%d, v3\nv_lshl_add_u32 v%d, v3, 4, v2" % (V_WO, V_WO, V_WO))
        A.e("v_lshlrev_b32 v%d, 3, v1" % V_L8)
    A.e("s_cmp_lt_u32 s2, 225\ns_cbranch_scc1 K2_a2")
    for ln in flat(fill_items()) + flat(q_lines(54)) + flat(fill_items()) + flat(fill_items()): A.e(ln)
    lane_consts()
    A.e("s_branch K2_a2_done")
    A.label("K2_a2")
    a2_loads(A)
    for ln in flat(fill_items()): A.e(ln)
    lane_consts()
    B = Asm(); B.uid = 100000
    a2_body(B, cfg)
    body = [x.strip() for x in B.L]
    late = q_lines(54)
    step = cfg.get("a2_step", 24)
    vt = VmTrack(); vt.add("a", 4); vt.add("f", 8)
    cnt = 0
    for k, ln in enumerate(body):
        if ln == "@WAIT_A2":
            A.e("s_waitcnt vmcnt(%d)" % vt.wait_for(lambda t: t == "a"))
            continue
        cnt += 1
        if late and cnt >= step and ln.startswith("v_") and body[k - 1].startswith("v_") and "mfma" not in ln:
            for x in late.pop(0): A.e(x)
            vt.add("q"); cnt = 0
        if ln.startswith("buffer_store") and late:
            for x in flat(late): A.e(x)
            late = []
        A.e(ln)
    for ln in flat(fill_items()) + flat(fill_items()): A.e(ln)
    A.label("K2_a2_done")
    A.e("s_cmp_eq_u32 s%d, 0\ns_cselect_b32 s3, 1, s%d\ns_cmp_eq_u32 s3, 0\ns_cselect_b32 s3, 0, 0x%x\nv_mov_b32 v2, s3\nv_mov_b32 v29, 0" % (S_SEG, S_DIAG, NEG_INF))
    for r0 in range(0, 16, 4):
        for r in range(r0, r0 + 4):
            A.e("v_cmp_gt_i32 s[%d:%d], %d, v%d" % (90 + 2 * (r & 3), 91 + 2 * (r & 3), (r & 3) + 8 * (r >> 2), V_QM))
        for r in range(r0, r0 + 4):
            A.e("v_cndmask_b32 v%d, 0, v2, s[%d:%d]" % (V_MK + r, 90 + 2 * (r & 3), 91 + 2 * (r & 3)))
    if cfg.get('stamps') != 4: stamp(A, cfg, 1)
    A.e("s_waitcnt vmcnt(16)\ns_barrier")
    if cfg.get('stamps') != 4: stamp(A, cfg, 2)
    adds, cv = finish_items()
    fi = fill_items()
    z = ["v_mov_b64 %s, 0" % v(V_O + 2 * i, 2) for i in range(64)]
    def nmm_items():
        return ["v_add_f32 v%d, v%d, v%d" % (V_NMM + r, V_NM, V_MK + r) for r in range(16)]
    def aux_loads():
        L = []
        for s_ in range(16):
            g = []
            if s_ % 4 == 0 and s_:
                g.append("s_add_u32 s%d, s%d, 0x1000" % (S_AUX, S_AUX))
            g.append("buffer_load_dwordx4 %s, v%d, s[12:15], s%d offen offset:%d sc1" % (a(A_Q + 4 * s_, 4), V_L16, S_AUX, (s_ % 4) * 1024))
            L.append(g)
        L.append(["s_add_u32 s%d, s%d, 0x1000" % (S_AUX, S_AUX), "buffer_load_dwordx2 v[28:29], v%d, s[12:15], s%d offen sc1" % (V_L8, S_AUX)])
        return L
    def aux_select():
        return ["v_readfirstlane_b32 s3, v29", ["s_cmp_eq_u32 s3, s%d" % S_WANT, "s_cselect_b32 s%d, s%d, 0x7fff0000" % (S_AUX, S_AUX)], "s_cselect_b32 s%d, 1, 0" % S_PRE]
    A.label("K2_seg")
    A.e("v_mov_b32 v%d, 0\nv_mov_b32 v%d, 0xf149f2ca" % (V_L, V_M))
    A.e("s_cmp_eq_u32 s%d, 0\ns_cbranch_scc1 K2_empty" % S_NW)
    for m in range(D): A.e(rd(m))
    A.e("s_cmp_eq_u32 s%d, 1\ns_cselect_b32 s4, -1, 0" % S_NW)
    for r in range(16):
        A.e("v_and_b32 v%d, s4, v%d" % (V_NM + r, V_MK + r))
    switch_check(A, True)
    slots = {}
    for m in range(16):
        if m % WP == 0:
            out = min(D - WP, 16 - m - WP)
            slots.setdefault(m - 1, []).append("s_waitcnt lgkmcnt(%d)" % max(out, 0))
        if m + D < 16:
            slots.setdefault(m, []).insert(0, rd(m + D))
    place(slots, fi, list(range(0, 15)))
    place(slots, z, [i // 4 for i in range(64)])
    interleave(A, [qk_mfma(s_) for s_ in range(16)], slots)
    cstamp(A, cfg, 4, 2)
    A.e("s_add_u32 s%d, s%d, s%d\ns_sub_u32 s%d, s%d, 2" % (S_FM, S_F, S_NW, S_FM, S_FM))
    A.e("s_add_u32 s3, s%d, 1\ns_cmp_eq_u32 s%d, 2\ns_cselect_b32 s%d, s3, -1" % (S_F, S_SEG, S_FF))
    A.e("s_cbranch_scc1 K2_t0_w2\ns_waitcnt vmcnt(16)")
    A.label("K2_t0_w2")
    A.e("s_waitcnt vmcnt(33)\ns_barrier")
    cstamp(A, cfg, 5, 2)
    for ln in flat(rd_advance()): A.e(ln)
    for m in range(D): A.e(rd(m))
    for ln in max_items(): A.e(ln)
    cross_half(A, "v_max_f32", V_M, V_MX)
    A.e("v_sub_f32 v%d, 0, v%d\nv_sub_f32 v%d, 0, v%d" % (V_NM, V_M, V_NM + 1, V_M))
    for r in range(0, 16, 2):
        A.e("v_pk_add_f32 %s, %s, %s" % (v(V_E + r, 2), v(V_S + r, 2), v(V_NM, 2)))
    na = nmm_items()
    for r in range(16):
        A.e("v_exp_f32 v%d, v%d" % (V_E + r, V_E + r))
        A.e(na[r])
    for r in range(2, 16, 2):
        A.e("v_mov_b64 %s, %s" % (v(V_NM + r, 2), v(V_NM, 2)))
    cstamp(A, cfg, 6, 2)
    A.e("s_cmp_eq_u32 s%d, 1\ns_cbranch_scc1 K2_tail1\ns_branch K2_ev" % S_NW)

    def tick(last):
        slots = {}
        for m in range(32):
            if m % WP == 0:
                slots.setdefault(m - 1, []).append("s_waitcnt lgkmcnt(%d)" % (D - WP))
            if m + D == 32:
                slots.setdefault(m - 1, []).extend(["s_waitcnt vmcnt(16)", "s_barrier"])
            k = m + D
            if last and k >= 32:
                slots.setdefault(m, []).insert(0, "ds_read_b128 %s, v%d offset:%d" % (frag(k), V_RD, (k - 16) * 1024))
            else:
                slots.setdefault(m, []).insert(0, rd(k))
        bg = 32 - D
        ra = rd_advance()
        slots.setdefault(bg - 3, []).extend(ra[0])
        slots.setdefault(bg - 2, []).append(ra[1][0])
        slots[bg - 1].append(ra[1][1])
        place(slots, adds, [2 * (k // 2) for k in range(16)])
        place(slots, cv, list(range(0, 16, 2)))
        place(slots, fi[:-1], [0, 2, 1, 3, 5, 7, 8, 8, 9, 11, 13, 15, 16, 16])
        place(slots, [fi[-1]], [24])
        mx = max_items()
        place(slots, mx, [17, 17, 18, 18, 19, 19, 20, 20])
        ex = ["v_exp_f32 v%d, v%d" % (V_E + r, V_S + r) for r in range(16)]
        place(slots, ex, cfg.get("expgaps", [17, 18, 19, 20, 21, 21, 22, 24, 25, 26, 27, 28, 28, 29, 30, 30]))
        place(slots, ["v_cmp_lt_f32 vcc, 0x%x, v%d" % (THR, V_MX)], [25])
        if last:
            place(slots, aux_select(), [24, 25, 25])
            place(slots, aux_loads(), [26, 26, 26, 27, 27, 27, 28, 28, 29, 29, 29, 30, 30, 31, 31, 31, 31])
        else:
            place(slots, ["s_cmp_eq_u32 s%d, s%d" % (S_F, S_EV)], [29])
        for pat in cfg.get("drop", []):
            for g in slots:
                slots[g] = [x for x in slots[g] if not x.startswith(pat)]
        mf = [qk_mfma(s_) for s_ in range(16)] + [pv_mfma(m) for m in range(16)]
        if last:
            mf[0] = mf[0].replace(v(V_NM, 16), v(V_NMM, 16))
        interleave(A, mf, slots)
    A.e(".p2align 6")
    A.label("K2_top")
    tick(False)
    A.e("s_cbranch_vccnz K2_rare_0")
    A.label("K2_rb_0")
    A.e("s_cbranch_scc0 K2_top")
    A.label("K2_ev")
    A.e("s_cmp_eq_u32 s%d, s%d\ns_cbranch_scc1 K2_act_sw" % (S_F, S_NSW))
    A.label("K2_ev1")
    A.e("s_cmp_eq_u32 s%d, s%d\ns_cbranch_scc1 K2_act_ff" % (S_F, S_FF))
    A.label("K2_ev2")
    A.e("s_cmp_eq_u32 s%d, s%d\ns_cbranch_scc0 K2_next" % (S_F, S_FM))
    tick(True)
    A.e("s_cbranch_vccnz K2_rare_1")
    A.label("K2_rb_1")
    A.label("K2_tail")
    stamp(A, cfg, 3) if cfg.get("stamps") != 4 else cstamp(A, cfg, 0, 0)
    for ln in cv: A.e(ln)
    slots = {}
    for m in range(16):
        if m % WP == 0:
            out = min(D - WP, 16 - m - WP)
            slots.setdefault(m - 1, []).append("s_waitcnt lgkmcnt(%d)" % max(out, 0))
        if m + D < 16:
            slots.setdefault(m, []).insert(0, rd(16 + m + D))
    place(slots, adds, [k // 2 for k in range(16)])
    place(slots, ["s_sub_u32 s%d, s%d, s%d" % (S_REM, S_N, S_NW), "v_mov_b32 v%d, v%d" % (V_T, V_L), "v_mov_b32 v%d, v%d" % (V_T + 1, V_L),
                  "v_permlane32_swap_b32 v%d, v%d" % (V_T, V_T + 1), "v_add_f32 v%d, v%d, v%d" % (V_L, V_T, V_T + 1), "s_cmp_eq_u32 s%d, 0" % S_REM], [8, 9, 9, 11, 13, 14])
    interleave(A, [pv_mfma(m) for m in range(16)], slots)
    A.e("s_cbranch_scc0 K2_idle")
    A.label("K2_segend")
    stamp(A, cfg, 4) if cfg.get("stamps") != 4 else cstamp(A, cfg, 1, 0)
    A.e("s_cmp_eq_u32 s%d, 0\ns_cbranch_scc1 K2_partial" % S_SEG)
    switch_check(A, True)
    for ln in flat(fill_items()): A.e(ln)
    def wo_base():
        return [["s_add_u32 s%d, s%d, 0x8000" % (S_RS, S_RS), "s_cmp_eq_u32 s%d, 0x28000" % S_RS],
                ["s_cselect_b32 s%d, 0, s%d" % (S_RS, S_RS)],
                ["v_add_u32 v%d, s%d, v%d" % (V_WR, S_RS, V_WB), "v_add_u32 v%d, s%d, v%d" % (V_WR + 1, S_RS, V_WB + 1)]]
    def wrd(m):
        s_, mt = (m % 32) >> 1, m & 1
        f = A_F + 4 * (m % 16)
        return ["ds_read_b64_tr_b16 %s, v%d offset:%d" % (a(f + 2 * e, 2), V_WR + mt, s_ * 2048 + e * 1024) for e in range(2)]
    DP = cfg.get("pdist", 7); PW = cfg.get("pwait", 4)
    RINV = V_T + 2
    def out_items(c):
        acc = 192 + 32 * (c & 1)
        L = []; ST = []
        for mt in range(2):
            for e in range(2):
                Dd = V_E + 4 * (2 * mt + e)
                for r in range(4):
                    o = acc + 16 * mt + 8 * e + 2 * r
                    L.append(["v_mul_f32 v%d, v%d, v%d" % (o, o, RINV), "v_mul_f32 v%d, v%d, v%d" % (o + 1, o + 1, RINV)])
                    L.append("v_cvt_pk_bf16_f32 v%d, v%d, v%d" % (Dd + r, o, o + 1))
                ST.append("buffer_store_dwordx4 %s, v%d, s[16:19], s%d offen offset:%d %s" % (v(Dd, 4), V_L16, S_PO, (2 * mt + e) * 1024, cfg.get("po_flags", "sc1")))
        ST.append("s_add_u32 s%d, s%d, 0x1000" % (S_PO, S_PO))
        return L, ST
    def conv(s_, merge):
        L = []
        if merge:
            for r in range(4):
                L.append("v_accvgpr_read_b32 v%d, a%d" % (32 + r, A_Q + 4 * s_ + r))
            for r in range(4):
                L.append("v_lshlrev_b32 v%d, 16, v%d" % (36 + 2 * r, 32 + r))
                L.append("v_and_b32 v%d, 0xffff0000, v%d" % (37 + 2 * r, 32 + r))
            for r in range(8):
                o = V_O + 8 * s_ + r
                L.append("v_fmac_f32 v%d, v%d, v%d" % (o, 36 + r, V_T + 6))
        for r in range(4):
            L.append("v_cvt_pk_bf16_f32 v%d, v%d, v%d" % (V_O + 4 * s_ + r, V_O + 8 * s_ + 2 * r, V_O + 8 * s_ + 2 * r + 1))
        return L
    def chunk(c, hist, merge=False):
        acc = 192 + 32 * (c & 1) if c else 64
        mf = []
        for m in range(32):
            s_, mt = m >> 1, m & 1
            cc = "0" if s_ == 0 else v(acc + 16 * mt, 16)
            mf.append("v_mfma_f32_32x32x16_bf16 %s, %s, %s, %s" % (v(acc + 16 * mt, 16), frag(m), v(V_O + 4 * s_, 4), cc))
        slots = {}
        last = c == 6
        if c < 4:
            place(slots, fill_items()[:-1], [0, 0, 1, 3, 5, 7, 8, 8, 9, 11, 13, 15, 16, 16])
            hist.append(("f", c + 3, 8))
        if c == 0:
            for s_ in range(2, 16):
                it = conv(s_, merge)
                h = len(it) // 2
                place(slots, [it[:h], it[h:]], [2 * s_ - 4, 2 * s_ - 3])
        if c > 0:
            L, ST = out_items(c - 1)
            if c == 1:
                fix = lambda x: x
                def mv(t):
                    import re
                    return re.sub(r"v(\d+)", lambda m_: "v%d" % (int(m_.group(1)) - 128) if int(m_.group(1)) >= 192 else m_.group(0), t)
                L = [[mv(y) for y in x] if isinstance(x, list) else mv(x) for x in L]
            g0 = [2, 2, 4, 4, 6, 6, 10, 10, 12, 12, 14, 14, 16, 17, 17, 18]
            gl = []
            for k in range(16): gl += [g0[k], g0[k]]
            if c >= 4:
                gl = [2 + (k * 16) // 32 for k in range(32)]
            place(slots, L, gl)
            place(slots, ST, [19, 20, 21, 22, 22])
            hist.append(("s", c - 1, 4))
        for m in range(32):
            if m % PW == 0:
                rem = 2 * (DP - PW) if not last else max(0, min(2 * (DP - PW), 2 * (32 - m - PW)))
                slots.setdefault(m - 1, []).append("s_waitcnt lgkmcnt(%d)" % rem)
            if m + DP == 32 and not last:
                k = [i for i, h in enumerate(hist) if h[0] == "f" and h[1] == c + 1][0]
                n = sum(h[2] for h in hist[k + 1:])
                wb = wo_base()
                slots.setdefault(m - 3, []).extend(wb[0])
                slots.setdefault(m - 2, []).extend(wb[1])
                slots.setdefault(m - 1, []).extend(["s_waitcnt vmcnt(%d)" % n, "s_barrier"] + wb[2])
            if m + DP < 32 or not last:
                slots.setdefault(m, [])[0:0] = wrd(m + DP)
        interleave(A, mf, slots)
    def proj_head(merge):
        A.e("s_barrier")
        for ln in flat(wo_base()): A.e(ln)
        for m in range(DP):
            for ln in wrd(m): A.e(ln)
        for ln in conv(0, merge) + conv(1, merge): A.e(ln)
    A.e("s_cmp_eq_u32 s%d, 1\ns_cbranch_scc1 K2_merge" % S_SEG)
    if cfg.get('stamps') != 4: stamp(A, cfg, 5)
    A.e("v_rcp_f32 v%d, v%d\ns_waitcnt vmcnt(33)" % (RINV, V_L))
    A.e("s_cmp_eq_u32 s%d, s%d\ns_cbranch_scc1 K2_fullw\ns_waitcnt vmcnt(16)" % (S_N, S_NW))
    A.label("K2_fullw")
    proj_head(False)
    hist = [("f", 1, 8), ("f", 2, 8)]
    chunk(0, hist, False)
    A.label("K2_proj1")
    for c in range(1, 7):
        chunk(c, hist)
    A.e("s_nop 7\ns_nop 3")
    L, ST = out_items(6)
    for k in range(4):
        for ln in flat(L[8 * k:8 * k + 8]) + [ST[k]]: A.e(ln)
    if cfg.get('stamps') != 4: stamp(A, cfg, 6)
    if cfg.get("stamps"):
        A.e("s_waitcnt vmcnt(0)")
        stamp(A, cfg, 7)
        write_stamps(A, 1, 8, 52)
    A.label("K2_END")
    A.e("s_endpgm")
    A.label("K2_merge")
    A.e("s_cmp_eq_u32 s%d, 1\ns_cbranch_scc1 K2_have" % S_PRE)
    srd_off(A, 4, 52, WS_FL, 0x8000)
    A.e("v_mov_b32 v3, s%d" % S_FLG)
    A.label("K2_poll")
    A.e("buffer_load_dword v2, v3, s[4:7], 0 offen sc1\ns_waitcnt vmcnt(0)\nv_readfirstlane_b32 s3, v2\ns_nop 3\ns_cmp_eq_u32 s3, 1\ns_cbranch_scc1 K2_got\ns_sleep 2\ns_branch K2_poll")
    A.label("K2_got")
    A.e("s_mov_b32 s%d, s%d" % (S_AUX, S_OP))
    for ln in flat(aux_loads()): A.e(ln)
    A.e("s_waitcnt vmcnt(0)")
    A.label("K2_have")
    A.e("s_waitcnt vmcnt(8)")
    if cfg.get('stamps') != 4: stamp(A, cfg, 5)
    T = V_T
    A.e("v_sub_f32 v%d, v28, v%d\nv_min_f32 v%d, 0x42200000, v%d\nv_exp_f32 v%d, v%d\ns_nop 0" % (T + 6, V_M, T + 6, T + 6, T + 6, T + 6))
    A.e("v_fma_f32 v%d, v%d, v29, v%d\nv_rcp_f32 v%d, v%d" % (T, T + 6, V_L, RINV, T))
    proj_head(True)
    chunk(0, [("f", 1, 8), ("f", 2, 8)], True)
    A.e("s_branch K2_proj1")
    A.label("K2_next")
    A.e("s_mov_b32 s%d, s%d" % (S_EV, S_FM))
    for r in (S_NSW, S_FF):
        A.e("s_cmp_gt_u32 s%d, s%d\ns_cselect_b32 s3, s%d, -1\ns_min_u32 s%d, s%d, s3" % (r, S_F, r, S_EV, S_EV))
    A.e("s_branch K2_top")
    A.label("K2_act_sw")
    switch_body(A)
    A.e("s_cmp_eq_u32 s%d, 1\ns_cbranch_scc0 K2_ev1" % S_SEG)
    srd_off(A, 4, 52, WS_FL, 0x8000)
    A.e("v_mov_b32 v3, s%d\nbuffer_load_dword v29, v3, s[4:7], 0 offen sc1\ns_branch K2_ev1" % S_FLG)
    A.label("K2_act_ff")
    flag_store(A)
    A.e("s_branch K2_ev2")
    A.label("K2_tail1")
    A.e("s_waitcnt lgkmcnt(0)")
    for m in range(16, 16 + D): A.e(rd(m))
    for ln in flat(aux_loads()): A.e(ln)
    A.e("s_branch K2_tail")
    A.label("K2_empty")
    for ln in z: A.e(ln)
    for ln in flat(aux_loads()): A.e(ln)
    A.e("s_mov_b32 s%d, s%d" % (S_REM, S_N))
    A.label("K2_idle")
    switch_check(A, True)
    for ln in flat(fill_items()): A.e(ln)
    A.e("s_waitcnt vmcnt(16)\ns_barrier")
    A.e("s_cmp_ge_u32 s%d, s%d\ns_cbranch_scc0 K2_idle_nf" % (S_F, S_FF))
    flag_store(A)
    A.label("K2_idle_nf")
    for ln in flat(rd_advance()): A.e(ln)
    A.e("s_sub_u32 s%d, s%d, 1\ns_cmp_eq_u32 s%d, 0\ns_cbranch_scc0 K2_idle\ns_branch K2_segend" % (S_REM, S_REM, S_REM))
    for u in range(2):
        A.label("K2_rare_%d" % u)
        h = A.new("K2_pc")
        A.e("s_getpc_b64 s[80:81]")
        A.label(h)
        A.e("s_add_u32 s80, s80, K2_rb_%d-%s\ns_addc_u32 s81, s81, -1\ns_branch K2_rare" % (u, h))
    A.label("K2_rare")
    cross_half(A, "v_max_f32", V_MX, V_MX)
    A.e("v_max_f32 v%d, 0, v%d" % (V_MX, V_MX))
    A.e("v_sub_f32 v%d, 0, v%d\nv_exp_f32 v%d, v%d" % (V_T + 2, V_MX, V_T + 2, V_T + 2))
    A.e("v_add_f32 v%d, v%d, v%d" % (V_M, V_M, V_MX))
    for r in range(16):
        A.e("v_sub_f32 v%d, v%d, v%d" % (V_E + r, V_S + r, V_MX))
    for r in range(16):
        A.e("v_exp_f32 v%d, v%d" % (V_E + r, V_E + r))
        A.e("v_sub_f32 v%d, v%d, v%d" % (V_NM + r, V_NM + r, V_MX))
    for ln in nmm_items(): A.e(ln)
    A.e("v_mul_f32 v%d, v%d, v%d" % (V_L, V_L, V_T + 2))
    for r in range(128):
        A.e("v_mul_f32 v%d, v%d, v%d" % (V_O + r, V_O + r, V_T + 2))
    A.e("s_cmp_eq_u32 s%d, s%d\ns_setpc_b64 s[80:81]" % (S_F, S_EV))
    A.label("K2_switch")
    switch_body(A)
    A.e("s_setpc_b64 s[58:59]")
    A.label("K2_partial")
    A.e("s_nop 7")
    for s_ in range(16):
        Dd = V_E + 4 * (s_ & 3)
        for r in range(4):
            A.e("v_cvt_pk_bf16_f32 v%d, v%d, v%d" % (Dd + r, V_O + 8 * s_ + 2 * r, V_O + 8 * s_ + 2 * r + 1))
        if s_ % 4 == 0 and s_:
            A.e("s_add_u32 s%d, s%d, 0x1000" % (S_OP, S_OP))
        A.e("buffer_store_dwordx4 %s, v%d, s[12:15], s%d offen offset:%d sc1" % (v(Dd, 4), V_L16, S_OP, (s_ % 4) * 1024))
    A.e("v_mov_b32 v%d, v%d\nv_mov_b32 v%d, v%d\ns_add_u32 s%d, s%d, 0x1000" % (V_T, V_M, V_T + 1, V_L, S_OP, S_OP))
    A.e("buffer_store_dwordx2 %s, v%d, s[12:15], s%d offen sc1" % (v(V_T, 2), V_L8, S_OP))
    A.e("s_mov_b32 s%d, 2\ns_mov_b32 s%d, s%d\ns_lshl_b32 s3, s%d, 2\ns_add_u32 s3, s3, s%d\ns_add_u32 s%d, s3, 1\ns_mov_b32 s%d, 1" % (S_SEG, S_N, S_N2, S_I, S_W, S_NW, S_DIAG))
    A.e("s_mov_b32 s%d, 0x7fff0000" % S_AUX)
    cstamp(A, cfg, 2, 2)
    A.e("s_waitcnt vmcnt(17)\nv_mov_b32 v29, 0")
    cstamp(A, cfg, 3, 2)
    A.e("s_branch K2_seg")
    A.label("K2_CODE_END")
    return kd(name, 512, 256)
```

```python
from asmlib import *
from k1 import write_stamps, f32bits
LAUNCH = "; @launch kernel=k3_kernel grid=(256,1,1) block=(448,1,1) lds=35840"

def stamp(A, cfg, idx):
    if cfg.get("stamps"):
        A.e("s_memtime s[%d:%d]" % (60 + 2 * idx, 61 + 2 * idx))

def gen_k3(A, cfg):
    name = "k3_kernel"
    A.e(".p2align 8\n.type %s,@function" % name)
    A.label(name)
    A.e("s_cmp_ge_u32 s2, 256\ns_cbranch_scc1 K3_END")
    stamp(A, cfg, 0)
    if cfg.get("stamps"): A.e("s_memrealtime s[88:89]")
    A.e("s_load_dwordx2 s[48:49], s[0:1], 72\ns_load_dwordx2 s[52:53], s[0:1], 88")
    code_touch(A, name, "K3_END", 20, 1, 190, 448)
    A.e("v_lshrrev_b32 v1, 6, v0\ns_nop 0\nv_readfirstlane_b32 s24, v1")
    A.e("s_lshr_b32 s25, s2, 2\ns_and_b32 s3, s2, 3\ns_mul_i32 s3, s3, 7\ns_add_u32 s26, s3, s24")
    A.e("s_mul_i32 s27, s25, 0x7000\ns_lshl_b32 s3, s26, 10\ns_add_u32 s27, s27, s3")
    A.e("v_and_b32 v1, 63, v0\nv_lshlrev_b32 v2, 4, v1")
    A.e("s_waitcnt lgkmcnt(0)")
    if cfg.get("wsoff"):
        A.e("s_add_u32 s52, s52, 0x%x\ns_addc_u32 s53, s53, 0" % cfg["wsoff"])
    srd_off(A, 16, 52, WS_ZT, 450 * 4096)
    A.e("v_and_b32 v3, 32, v1\nv_xor_b32 v3, v3, v2")
    A.e("s_mul_i32 s29, s25, %d\ns_mul_i32 s30, s24, 5120\ns_add_u32 s29, s29, s30\ns_mov_b32 m0, s30\ns_add_u32 s3, s29, 4096" % (450 * 64))
    for i in range(4):
        A.e("buffer_load_dwordx4 v3, s[16:19], s29 offen offset:%d lds" % (i * 1024))
    A.e("s_add_u32 m0, s30, 4096\ns_nop 0\nbuffer_load_dwordx4 v3, s[16:19], s3 offen lds")
    srd_off(A, 8, 52, WS_PO, 16 * 64 * 0x7000)
    srd(A, 12, 48, 2048 * 1792)
    vt = VmTrack(); vt.add("z")
    nxt = [0]
    def po_next():
        if nxt[0] < 16:
            po_load(nxt[0]); vt.add(nxt[0]); nxt[0] += 1
            return True
        return False
    def po_load(h):
        A.e("buffer_load_dwordx4 %s, v2, s[8:11], s27 offen %s" % (v(16 + 4 * h, 4), cfg.get("f_po", "")))
        if h < 15: A.e("s_add_u32 s27, s27, 0x%x" % (64 * 0x7000))
    NEARLY = cfg.get("k3_early", 4); EVERY = cfg.get("k3_every", 3)
    for h in range(NEARLY): po_next()
    A.e("v_and_b32 v3, 31, v1\nv_mul_u32_u24 v3, 1792, v3\nv_lshrrev_b32 v4, 5, v1\nv_lshl_add_u32 v3, v4, 4, v3")
    A.e("s_mul_i32 s28, s25, %d\ns_lshl_b32 s3, s26, 5\ns_add_u32 s28, s28, s3\ns_add_u32 s28, s28, 896" % (32 * 1792))
    A.e("v_and_b32 v4, 15, v1\nv_lshrrev_b32 v5, 4, v1\ns_lshl_b32 s3, s26, 4\nv_add_u32 v6, s3, v4\nv_cvt_f32_u32 v6, v6")
    A.e("v_mul_f32 v80, 0x%x, v6\nv_cvt_f32_u32 v6, v5\nv_mul_f32 v6, 4.0, v6\nv_mul_f32 v81, v6, v80" % f32bits(1.0 / 448))
    A.e("v_bfe_u32 v6, v1, 2, 2\nv_lshl_add_u32 v6, v5, 3, v6\nv_lshlrev_b32 v6, 6, v6\nv_and_b32 v7, 3, v1\nv_lshl_add_u32 v6, v7, 3, v6")
    A.e("v_and_b32 v7, 1, v5\nv_lshl_add_u32 v82, v7, 5, v6\nv_xor_b32 v83, 32, v82")
    A.e("v_bfe_u32 v6, v4, 1, 2\nv_lshlrev_b32 v6, 3, v6\nv_lshrrev_b32 v7, 3, v4\nv_lshl_add_u32 v6, v7, 1, v6\nv_and_b32 v7, 1, v4\nv_add_u32 v6, v6, v7")
    A.e("v_mul_u32_u24 v6, 1792, v6\nv_lshl_add_u32 v84, v5, 3, v6")
    A.e("s_mul_i32 s31, s25, %d\ns_lshl_b32 s3, s26, 5\ns_add_u32 s31, s31, s3\ns_add_u32 s32, s31, %d" % (32 * 1792, 4 * 1792))
    GB = 128
    for p in range(15):
        for j in range(4):
            A.e("v_fmamk_f32 v%d, v80, 0x%x, v81" % (8 + j, f32bits(float(16 * p + j))))
        for j in range(4):
            A.e("v_cos_f32 v%d, v%d\nv_sin_f32 v%d, v%d" % (12 + j, 8 + j, 8 + j, 8 + j))
        if not (p % EVERY == EVERY - 1 and po_next()): A.e("s_nop 0")
        for j in range(4):
            A.e("v_cvt_pk_bf16_f32 v%d, v%d, -v%d" % (GB + 4 * p + j, 12 + j, 8 + j))
    A.e("v_cmp_eq_u32 vcc, 0, v5\nv_mov_b32 v%d, 0\nv_mov_b32 v%d, 0\nv_mov_b32 v%d, 0\nv_cndmask_b32 v%d, 0, v%d, vcc" % (GB + 57, GB + 58, GB + 59, GB + 56, GB + 56))
    stamp(A, cfg, 1)
    A.e("s_waitcnt vmcnt(%d)\ns_barrier" % vt.wait_for(lambda t: t == "z"))
    stamp(A, cfg, 2)
    def zrd(p):
        fb = 88 + 8 * (p % 3)
        for u in range(2):
            for e in range(2):
                A.e("ds_read_b64_tr_b16 %s, v%d offset:%d" % (v(fb + 4 * u + 2 * e, 2), 82 + u, p * 2048 + e * 256))
    zrd(0); zrd(1); po_next()
    for p in range(15):
        fb = 88 + 8 * (p % 3)
        if p + 2 < 15: zrd(p + 2)
        A.e("s_waitcnt lgkmcnt(%d)" % (4 * min(2, 14 - p)))
        for u in range(2):
            A.e("v_mfma_f32_16x16x32_bf16 %s, %s, %s, %s" % (v(112 + 4 * u, 4), v(GB + 4 * p, 4), v(fb + 4 * u, 4), "0" if p == 0 else v(112 + 4 * u, 4)))
    A.e("s_nop 7")
    for u in range(2):
        A.e("v_cvt_pk_bf16_f32 v%d, v112, v113\nv_cvt_pk_bf16_f32 v%d, v114, v115".replace("112", str(112 + 4 * u)).replace("113", str(113 + 4 * u)).replace("114", str(114 + 4 * u)).replace("115", str(115 + 4 * u)) % (88 + 2 * u, 89 + 2 * u))
        A.e("buffer_store_dwordx2 %s, v84, s[12:15], s%d offen" % (v(88 + 2 * u, 2), 31 + u))
        vt.add("s")
    stamp(A, cfg, 3)
    for h in range(16):
        po_next()
        A.e("s_waitcnt vmcnt(%d)" % vt.wait_for(lambda t: t == h))
        for r in range(4):
            src = 16 + 4 * h + r
            if h == 0:
                A.e("v_lshlrev_b32 v%d, 16, v%d\nv_and_b32 v%d, 0xffff0000, v%d" % (8 + 2 * r, src, 9 + 2 * r, src))
            else:
                A.e("v_lshlrev_b32 v6, 16, v%d\nv_and_b32 v7, 0xffff0000, v%d" % (src, src))
                A.e("v_pk_add_f32 %s, %s, v[6:7]" % (v(8 + 2 * r, 2), v(8 + 2 * r, 2)))
    for r in range(4):
        A.e("v_cvt_pk_bf16_f32 v%d, v%d, v%d" % (16 + r, 8 + 2 * r, 9 + 2 * r))
    A.e("s_nop 1\nv_permlane32_swap_b32 v16, v18\nv_permlane32_swap_b32 v17, v19")
    A.e("buffer_store_dwordx4 v[16:19], v3, s[12:15], s28 offen")
    stamp(A, cfg, 4)
    if cfg.get("stamps"):
        A.e("s_waitcnt vmcnt(0)")
        stamp(A, cfg, 5)
        write_stamps(A, 2, 6, 52)
    A.label("K3_END")
    A.e("s_endpgm")
    return kd(name, 192, 192)
```

```python
import sys
from asmlib import *
import k1
HDR = open("concat_heads__spectral_gfnet__compressed_kv_cla__prompt.s.ref").read().split("; Override launch")[0]
def build(cfg):
    A = Asm()
    launches = []
    kds = []
    ks = cfg.get("kernels", "123")
    if "1" in ks:
        launches.append("; @launch kernel=k1_kernel grid=(256,1,1) block=(256,1,1) lds=163840")
        kds.append(k1.gen_k1(A, cfg))
    if "2" in ks:
        import k2
        launches.append("; @launch kernel=k2_kernel grid=(256,1,1) block=(256,1,1) lds=163840")
        kds.append(k2.gen_k2(A, cfg))
    if "3" in ks:
        import k3
        launches.append(k3.LAUNCH)
        kds.append(k3.gen_k3(A, cfg))
    for i in range(cfg.get("empty", 0)):
        launches.append("; @launch kernel=e%d_kernel grid=(256,1,1) block=(64,1,1) lds=0" % i)
        A.e(".p2align 8\n.type e%d_kernel,@function" % i); A.label("e%d_kernel" % i); A.e("s_endpgm")
        kds.append(kd("e%d_kernel" % i, 8, 8, 16))
    out = HDR + "\n".join(launches) + '\n.amdgcn_target "amdgcn-amd-amdhsa--gfx950"\n.text\n' + A.text()
    out += '.section .rodata,"a"\n' + "".join(kds)
    return out
if __name__ == "__main__":
    cfg = eval(sys.argv[2]) if len(sys.argv) > 2 else {}
    open(sys.argv[1], "w").write(build(cfg))
```
